```python
import torch

def _softmax(x, axis=-1):
    return torch.softmax(x, dim=axis)
def _gelu(x):
    return torch.nn.functional.gelu(x, approximate="tanh")
def _silu(x):
    return torch.nn.functional.silu(x)
def _sigmoid(x):
    return torch.sigmoid(x)
def _layernorm(x, axis=-1, eps=1e-5):
    m = x.mean(dim=axis, keepdim=True)
    v = x.var(dim=axis, keepdim=True, unbiased=False)
    return (x - m) / torch.sqrt(v + eps)
def _scatter_add(tgt, idx, src, axis=0):
    return tgt.clone().index_add_(axis, idx, src)
def _segment_sum(src, seg, n):
    out = torch.zeros((n,) + src.shape[1:], dtype=src.dtype)
    return out.index_add_(0, seg, src)
def _pad(x, pw):
    flat = tuple(v for pair in reversed(pw) for v in pair)
    return torch.nn.functional.pad(x, flat)

kernel_name = 'gated_mix__ssm_conv_s4__glu_gated_bilinear__prompt'

def setup_inputs():

    _w = (lambda a: (lambda t: t.to(torch.bfloat16) if t.is_floating_point() else t)(torch.as_tensor(a)))
    def _A_setup():
        B, L, D, N = 1, 2048, 576, 128
        A_re = -(lambda _x: torch.exp(torch.as_tensor(_x)))((lambda *s: torch.randn(*s, dtype=torch.bfloat16) * 3.2)(D, N))
        A_im = torch.pi * (lambda *s: torch.randn(*s, dtype=torch.bfloat16) * 0.05)(D, N)
        B_re = (lambda *s: torch.randn(*s, dtype=torch.bfloat16) * 0.1)(D, N)
        B_im = (lambda *s: torch.randn(*s, dtype=torch.bfloat16) * 0.1)(D, N)
        C_re = (lambda *s: torch.randn(*s, dtype=torch.bfloat16) * 0.1)(D, N)
        C_im = (lambda *s: torch.randn(*s, dtype=torch.bfloat16) * 0.1)(D, N)
        log_dt = (lambda *s: torch.randn(*s, dtype=torch.bfloat16) * 0.05)(D) * 0.5 - 4.0
        Dskip = (lambda *s: torch.randn(*s, dtype=torch.bfloat16) * 0.05)(D)
        return {
            "u": _w((lambda *s: torch.randn(*s, dtype=torch.bfloat16) * 0.05)(B, L, D)),
            "A_re": _w(A_re),
            "A_im": _w(A_im),
            "B_re": _w(B_re),
            "B_im": _w(B_im),
            "C_re": _w(C_re),
            "C_im": _w(C_im),
            "log_dt": _w(log_dt),
            "Dskip": _w(Dskip),
        }
    _A_in = _A_setup()

    def _B_setup():
        B, S, D, F = 1, 2048, 576, 4608
        return {
            "x": _w((lambda *s: torch.randn(*s, dtype=torch.bfloat16) * 0.05)(B, S, D)),
            "w_gate": _w((lambda *s: torch.randn(*s, dtype=torch.bfloat16) * 0.8)(D, F) * (D ** -0.5)),
            "w_up": _w((lambda *s: torch.randn(*s, dtype=torch.bfloat16) * 0.8)(D, F) * (D ** -0.5)),
            "w_down": _w((lambda *s: torch.randn(*s, dtype=torch.bfloat16) * 0.8)(F, D) * (F ** -0.5)),
        }
    _B_in = _B_setup()

    return {
        "A_u": _A_in["u"],
        "A_A_re": _A_in["A_re"],
        "A_A_im": _A_in["A_im"],
        "A_B_re": _A_in["B_re"],
        "A_B_im": _A_in["B_im"],
        "A_C_re": _A_in["C_re"],
        "A_C_im": _A_in["C_im"],
        "A_log_dt": _A_in["log_dt"],
        "A_Dskip": _A_in["Dskip"],
        "B_x": _B_in["x"],
        "B_w_gate": _B_in["w_gate"],
        "B_w_up": _B_in["w_up"],
        "B_w_down": _B_in["w_down"],
        "gate_w": _w((lambda *s: torch.randn(*s, dtype=torch.bfloat16) * 0.05)(576) * 16.0),
    }

def reference(A_u, A_A_re, A_A_im, A_B_re, A_B_im, A_C_re, A_C_im, A_log_dt, A_Dskip, B_x, B_w_gate, B_w_up, B_w_down, gate_w):
    def _A_ref(u, A_re, A_im, B_re, B_im, C_re, C_im, log_dt, Dskip):
        Bsz, L, D = u.shape
        dt = torch.exp(log_dt)[:, None]
        A = A_re + 1j * A_im
        Bc = B_re + 1j * B_im
        Cc = C_re + 1j * C_im
        logdA = dt * A
        dB = dt * Bc
        l = (lambda x, dt: x.to(dt))(torch.arange(L), A_re.dtype)
        P = torch.exp(logdA[:, :, None] * l[None, None, :])
        K = torch.einsum("dn,dnl,dn->dl", Cc, P, dB).real
        L2 = 2 * L
        Kp = _pad(K, ((0, 0), (0, L)))
        up = (lambda x, *d: x.permute(*d))(u, 0, 2, 1)
        up = _pad(up, ((0, 0), (0, 0), (0, L)))
        Kf = (lambda x, axes=(-2,-1): torch.fft.rfft2(x.float(), dim=axes))(Kp[:, None, :], axes=(-2, -1))
        Uf = (lambda x, axes=(-2,-1): torch.fft.rfft2(x.float(), dim=axes))(up[:, :, None, :], axes=(-2, -1))
        Yf = Uf * Kf[None, :, :, :]
        y = (lambda x, s, axes=(-2,-1): torch.fft.irfft2(x, s=s, dim=axes).to(torch.bfloat16))(Yf, (1, L2), axes=(-2, -1))[:, :, 0, :L]
        y = (lambda x, *d: x.permute(*d))(y, 0, 2, 1) + u * Dskip[None, None, :]
        return y

    def _B_ref(x, w_gate, w_up, w_down):
        g = torch.einsum("bsd,df->bsf", x, w_gate)
        u = torch.einsum("bsd,df->bsf", x, w_up)
        h = g * u
        return torch.einsum("bsf,fd->bsd", h, w_down)

    x = A_u
    g = _sigmoid((x * gate_w).sum(-1, keepdims=True))
    a = _A_ref(x, A_A_re, A_A_im, A_B_re, A_B_im, A_C_re, A_C_im, A_log_dt, A_Dskip)
    b = _B_ref(x, B_w_gate, B_w_up, B_w_down)
    return g * a + (1 - g) * b
```

```python
class Asm:
    def __init__(self):
        self.lines = []
        self.kernels = []
        self.launches = []
        self.nlabel = 0
    def __call__(self, s):
        for l in s.split("\n"):
            l = l.strip()
            if l: self.lines.append("    " + l if not l.endswith(":") else l)
    def label(self, prefix="L"):
        self.nlabel += 1
        return f"{prefix}_{self.nlabel}"
    def begin_kernel(self, name):
        self.lines.append(f".globl {name}")
        self.lines.append(".p2align 8")
        self.lines.append(f".type {name},@function")
        self.lines.append(f"{name}:")
    def end_kernel(self, name, vgpr, sgpr=102, accum=None):
        if accum is None: accum = min(256, (vgpr + 3)//4*4)
        self.kernels.append((name, vgpr, sgpr, accum))
    def launch(self, name, grid, block, lds):
        self.launches.append((name, grid, block, lds))
    def text(self, header=""):
        o = []
        if header: o.append(header.rstrip("\n"))
        for (n,g,b,l) in self.launches:
            o.append(f"; @launch kernel={n} grid=({g[0]},{g[1]},{g[2]}) block=({b[0]},{b[1]},{b[2]}) lds={l}")
        o.append('.amdgcn_target "amdgcn-amd-amdhsa--gfx950"')
        o.append(".text")
        o += self.lines
        o.append('.section .rodata,"a"')
        for (n,v,s,a) in self.kernels:
            o.append(".p2align 6")
            o.append(f".amdhsa_kernel {n}")
            o.append(f"  .amdhsa_next_free_vgpr {v}")
            o.append(f"  .amdhsa_next_free_sgpr {s}")
            o.append(f"  .amdhsa_accum_offset {a}")
            o.append("  .amdhsa_group_segment_fixed_size 0")
            o.append("  .amdhsa_kernarg_size 136")
            o.append("  .amdhsa_user_sgpr_count 2")
            o.append("  .amdhsa_user_sgpr_kernarg_segment_ptr 1")
            o.append("  .amdhsa_system_sgpr_workgroup_id_x 1")
            o.append("  .amdhsa_float_denorm_mode_32 3")
            o.append("  .amdhsa_float_denorm_mode_16_64 3")
            o.append(".end_amdhsa_kernel")
        return "\n".join(o) + "\n"
```

```python
import sys
from asmlib import Asm

class Stream:
    def __init__(self, a):
        self.a = a
        self.vm = []; self.vm_done = -1
        self.ds = []; self.ds_done = -1
    def __call__(self, s): self.a(s)
    def vmem(self, s, tag):
        self.a(s); self.vm.append(tag)
    def lds(self, s, tag=None):
        self.a(s); self.ds.append(tag)
    def wait_vm(self, tags):
        last = -1
        for i in range(len(self.vm)-1, self.vm_done, -1):
            if self.vm[i] in tags: last = i; break
        if last < 0: return 0
        n = len(self.vm) - 1 - last
        self.vm_done = last
        if n < 63: self.a(f"s_waitcnt vmcnt({n})"); return 1
        return 0
    def wait_ds(self, tags):
        last = -1
        for i in range(len(self.ds)-1, self.ds_done, -1):
            if self.ds[i] in tags: last = i; break
        if last < 0: return 0
        n = min(15, len(self.ds) - 1 - last)
        self.ds_done = len(self.ds) - 1 - n
        self.a(f"s_waitcnt lgkmcnt({n})"); return 1
    def wait_ds_all(self):
        if self.ds_done < len(self.ds) - 1:
            self.a("s_waitcnt lgkmcnt(0)"); self.ds_done = len(self.ds) - 1

XST = 65536
G1_LDS = 163840
WINS = [0, 61440, 122880]

def gen_gemm1(a, name, H_OFF=0x100000, stamp=True, stflags='', do_store=True, stamp_off=0, fine=False, opt=''):
    S = Stream(a)
    ACC = 0
    XV = 128
    AF = 160
    V = 224
    vT = V
    vT2 = V+12
    vW = V+18
    vW2 = V+19
    vX = V+20
    vXr = V+24
    vS01, vS23 = V+26, V+27
    vt = V+27
    def acc(mat, j, rt): return ACC + ((j*2+mat)*4+rt)*4
    def xreg(ks, rt):
        idx = ks*4+rt
        if idx < 64: return f"a[{idx*4}:{idx*4+3}]"
        r = XV + (idx-64)*4
        return f"v[{r}:{r+3}]"
    a.begin_kernel(name)
    a(f"""
    s_cmp_ge_u32 s2, 256
    s_cbranch_scc1 {name}_end
    s_load_dwordx2 s[4:5], s[0:1], 128
    s_load_dwordx2 s[6:7], s[0:1], 0
    s_load_dwordx4 s[28:31], s[0:1], 80
    s_memrealtime s[40:41]
    s_and_b32 s12, s2, 7             ; G (xcd)
    s_lshr_b32 s13, s2, 3
    s_and_b32 s14, s13, 3            ; i
    s_lshr_b32 s15, s13, 2           ; mt
    v_lshrrev_b32 v{vt}, 6, v0
    v_and_b32 v{vt+1}, 63, v0        ; lane
    s_nop 0
    v_readfirstlane_b32 s17, v{vt}   ; wave
    s_mul_i32 s16, s12, 9
    s_lshl_b32 s18, s14, 1
    s_add_u32 s18, s18, s16          ; LC0 = 9G+2i
    s_add_u32 s19, s16, 8            ; LC2 = 9G+8
    s_and_b32 s33, s14, 1            ; half
    s_lshr_b32 s34, s14, 1           ; swap (0/1)
    v_lshrrev_b32 v{vt+2}, 3, v{vt+1}
    v_mul_u32_u24 v{vt+2}, 9216, v{vt+2}
    v_bfe_u32 v{vt+3}, v{vt+1}, 4, 1
    v_lshlrev_b32 v{vt+3}, 1, v{vt+3}
    s_and_b32 s43, s17, 1
    s_lshl_b32 s43, s43, 2
    v_or_b32 v{vt+3}, s43, v{vt+3}
    v_and_b32 v{vt+4}, 7, v{vt+1}
    v_xor_b32 v{vt+3}, v{vt+3}, v{vt+4}
    v_lshlrev_b32 v{vt+3}, 4, v{vt+3}
    v_add_u32 v{vW}, v{vt+2}, v{vt+3}
    s_mul_i32 s43, s17, {8*9216}
    v_add_u32 v{vW}, s43, v{vW}
    v_lshrrev_b32 v{vt+2}, 3, v{vt+1}
    v_mul_u32_u24 v{vt+2}, 1152, v{vt+2}
    v_lshrrev_b32 v{vt+3}, 4, v{vt+1}
    v_xor_b32 v{vt+3}, v{vt+3}, v{vt+4}
    v_lshlrev_b32 v{vt+3}, 4, v{vt+3}
    v_add_u32 v{vX}, v{vt+2}, v{vt+3}
    v_xor_b32 v{vt+3}, 64, v{vt+3}
    v_add_u32 v{vX+1}, v{vt+2}, v{vt+3}
    v_add_u32 v{vX+1}, {8192}, v{vX+1}
    v_add_u32 v{vX+2}, {2*8192}, v{vX}
    v_add_u32 v{vX+3}, {2*8192}, v{vX+1}
    s_lshl_b32 s48, s18, 7
    s_add_u32 s49, s48, 128
    s_lshl_b32 s50, s19, 7
    s_lshl_b32 s43, s33, 6
    s_add_u32 s50, s50, s43
    s_lshl_b32 s51, s17, 11
    s_lshl_b32 s55, s17, 10          ; w*1024  (pass 2)
    s_lshl_b32 s42, s15, 8
    s_lshl_b32 s43, s17, 6
    s_add_u32 s42, s42, s43
    s_lshl_b32 s43, s34, 5
    s_add_u32 s80, s42, s43
    s_mul_i32 s80, s80, 1152
    s_xor_b32 s43, s43, 32
    s_add_u32 s81, s42, s43
    s_mul_i32 s81, s81, 1152
    s_lshl_b32 s82, s17, 13
    s_add_u32 s82, s82, {XST}
    s_waitcnt lgkmcnt(0)
    s_mov_b32 s20, s28
    s_mov_b32 s21, s29
    s_mov_b32 s22, {576*9216}
    s_mov_b32 s23, 0x20000
    s_sub_u32 s24, s30, 1024
    s_subb_u32 s25, s31, 0
    s_mov_b32 s26, {576*9216+1024}
    s_mov_b32 s27, 0x20000
    ; SRD x: s[8:11]
    s_mov_b32 s8, s6
    s_mov_b32 s9, s7
    s_mov_b32 s10, {2048*1152}
    s_mov_b32 s11, 0x20000
    """)
    rest_setup = f"""
    ; SRD H s[36:39]
    s_add_u32 s36, s4, {H_OFF}
    s_addc_u32 s37, s5, 0
    s_mov_b32 s38, {144*131072}
    s_mov_b32 s39, 0x20000
    v_lshrrev_b32 v{vt+2}, 2, v{vt+1}
    v_mul_u32_u24 v{vt+2}, 9216, v{vt+2}
    v_lshrrev_b32 v{vt+3}, 5, v{vt+1}
    v_lshlrev_b32 v{vt+3}, 1, v{vt+3}
    v_and_b32 v{vt+4}, 3, v{vt+1}
    v_xor_b32 v{vt+3}, v{vt+3}, v{vt+4}
    v_lshlrev_b32 v{vt+3}, 4, v{vt+3}
    v_add_u32 v{vW2}, v{vt+2}, v{vt+3}
    s_and_b32 s43, s17, 1
    s_mul_i32 s43, s43, {16*9216}
    v_add_u32 v{vW2}, s43, v{vW2}
    s_cmp_lt_u32 s17, 2
    s_cselect_b32 s56, s28, s30
    s_cselect_b32 s57, s29, s31
    s_mov_b32 s58, {576*9216}
    s_mov_b32 s59, 0x20000
    v_lshrrev_b32 v{vt+2}, 4, v{vt+1}
    v_lshlrev_b32 v{vt+2}, 11, v{vt+2}
    v_bfe_u32 v{vt+3}, v{vt+1}, 2, 2
    v_lshlrev_b32 v{vt+3}, 7, v{vt+3}
    v_add_u32 v{vt+2}, v{vt+2}, v{vt+3}
    v_and_b32 v{vt+3}, 3, v{vt+1}
    v_lshlrev_b32 v{vt+3}, 3, v{vt+3}
    v_add_u32 v{vt+2}, v{vt+2}, v{vt+3}
    v_bfe_u32 v{vt+3}, v{vt+1}, 3, 2
    v_lshlrev_b32 v{vt+3}, 5, v{vt+3}
    """
    for j in range(4):
        rest_setup += f"""
        v_xor_b32 v{vt+4}, {32*j}, v{vt+3}
        v_add_u32 v{vT+j}, v{vt+2}, v{vt+4}
        v_add_u32 v{vT+4+j}, {WINS[1]}, v{vT+j}
        v_add_u32 v{vT+8+j}, {WINS[2]}, v{vT+j}
        """
    rest_setup += f"""
    v_and_b32 v{vt+2}, 15, v{vt+1}
    v_lshrrev_b32 v{vt+3}, 1, v{vt+2}
    v_lshlrev_b32 v{vt+2}, 7, v{vt+2}
    v_lshrrev_b32 v{vt+4}, 4, v{vt+1}
    v_xor_b32 v{vt+3}, v{vt+3}, v{vt+4}
    v_lshlrev_b32 v{vt+3}, 4, v{vt+3}
    v_add_u32 v{vt+2}, v{vt+2}, v{vt+3}
    v_add_u32 v{vXr}, s82, v{vt+2}
    v_xor_b32 v{vXr+1}, 64, v{vXr}
    v_add_u32 v{vT2}, 65536, v{vXr}
    v_add_u32 v{vT2+1}, 65536, v{vXr+1}
    v_lshlrev_b32 v{vt+2}, 4, v{vt+1}
    s_lshl_b32 s42, s15, 14
    s_lshl_b32 s43, s17, 12
    s_add_u32 s42, s42, s43
    s_lshl_b32 s43, s34, 11
    s_add_u32 s52, s42, s43
    v_add_u32 v{vS01}, s52, v{vt+2}
    s_xor_b32 s43, s43, 2048
    s_add_u32 s52, s42, s43
    v_add_u32 v{vS23}, s52, v{vt+2}
    s_lshl_b32 s60, s18, 18
    s_add_u32 s61, s60, {1<<17}
    s_add_u32 s62, s60, {2<<17}
    s_add_u32 s63, s60, {3<<17}
    s_lshl_b32 s35, s19, 1
    s_add_u32 s35, s35, s33
    s_lshl_b32 s35, s35, 17
    """
    late_setup = f"""
    v_lshrrev_b32 v{vt+2}, 4, v{vt+1}
    v_lshlrev_b32 v{vt+2}, 9, v{vt+2}
    v_bfe_u32 v{vt+3}, v{vt+1}, 2, 2
    v_lshlrev_b32 v{vt+3}, 6, v{vt+3}
    v_add_u32 v{vt+2}, v{vt+2}, v{vt+3}
    v_and_b32 v{vt+3}, 3, v{vt+1}
    v_lshlrev_b32 v{vt+3}, 3, v{vt+3}
    v_add_u32 v{vt+2}, v{vt+2}, v{vt+3}
    v_bfe_u32 v{vt+3}, v{vt+1}, 4, 1
    v_lshlrev_b32 v{vt+3}, 5, v{vt+3}
    v_add_u32 v{vT2}, v{vt+2}, v{vt+3}
    v_xor_b32 v{vt+3}, 32, v{vt+3}
    v_add_u32 v{vT2+1}, v{vt+2}, v{vt+3}
    v_add_u32 v{vT2+2}, {WINS[1]}, v{vT2}
    v_add_u32 v{vT2+3}, {WINS[1]}, v{vT2+1}
    v_add_u32 v{vT2+4}, {WINS[2]}, v{vT2}
    v_add_u32 v{vT2+5}, {WINS[2]}, v{vT2+1}
    """
    stages = []
    for k in range(9): stages.append((0, [2*k, 2*k+1], (k % 4)*16384, 2))
    ring = [65536, 98304, 131072, 0, 32768]
    for k in range(6): stages.append((1, [3*k, 3*k+1, 3*k+2], ring[k % 5], 3))
    for k in range(3): stages.append((2, list(range(6*k, 6*k+6)), ring[(6+k) % 5], 3))
    NST = len(stages)
    blocks = []
    first = {}; last = {}
    for s, (p, kl, base, nb) in enumerate(stages):
        per = len(kl)//nb
        first[s] = len(blocks)
        for b in range(nb): blocks.append((p, kl[b*per:(b+1)*per], s, b))
        last[s] = len(blocks) - 1
    NB = len(blocks)
    def ssize(s): return len(stages[s][1]) * (8192 if stages[s][0] < 2 else 4096)
    avail = {}
    for s in range(NST):
        lo, hi = stages[s][2], stages[s][2] + ssize(s)
        e = -1
        for u in range(s):
            if stages[u][2] < hi and lo < stages[u][2] + ssize(u): e = max(e, last[u])
        for g in range(9):
            xl = XST + (g % 3)*32768
            if xl < hi and lo < xl + 32768: e = max(e, 2*g)
        avail[s] = e
    def lds_off(s, kidx):
        return stages[s][2] + kidx*(8192 if stages[s][0] < 2 else 4096)
    def dma_ops(s):
        p, kl = stages[s][:2]
        ops = []
        if "nodma" in opt and s > 0: return ops
        for kidx, ks in enumerate(kl):
            o = lds_off(s, kidx)
            if p < 2:
                ops.append(lambda o=o: S(f"s_add_u32 m0, s51, {o}"))
                ops.append(lambda ks=ks: S(f"s_add_u32 s52, s{48+p}, {ks*32*9216}"))
                ops.append(lambda: S.vmem(f"buffer_load_dwordx4 v{vW}, s[20:23], s52 offen lds", ("W", s)))
                ops.append(lambda: S.vmem(f"buffer_load_dwordx4 v{vW}, s[24:27], s52 offen offset:1024 lds", ("W", s)))
            else:
                ops.append(lambda o=o: S(f"s_add_u32 m0, s55, {o}"))
                ops.append(lambda ks=ks: S(f"s_add_u32 s52, s50, {ks*32*9216}"))
                ops.append(lambda: S.vmem(f"buffer_load_dwordx4 v{vW2}, s[56:59], s52 offen lds", ("W", s)))
        return ops
    def xload_ops(g):
        if "noxl" in opt and g > 0: return []
        ops = []
        if g >= 3: ops.append(lambda: S.wait_ds({("x", 2*(g-3)+kk, rt) for kk in range(2) for rt in range(4)}))
        for h in range(2):
            ops.append(lambda h=h: S(f"s_add_u32 m0, s82, {(g % 3)*32768 + h*4096}"))
            ops.append(lambda h=h: S(f"s_add_u32 s52, s{80+h}, {g*128}"))
            for b in range(4):
                ops.append(lambda b=b: S.vmem(f"buffer_load_dwordx4 v{vX+b}, s[8:11], s52 offen offset:{b*1024} lds", ("X", g)))
        return ops
    def xr_ops(g):
        if "noxr" in opt and g > 0: return []
        o = (g % 3)*32768
        br = vXr
        if o >= 65536: o -= 65536; br = vT2
        return [lambda kk=kk, rt=rt: S.lds(f"ds_read_b128 {xreg(2*g+kk, rt)}, v{br+kk} offset:{o + rt*2048}", ("x", 2*g+kk, rt)) for kk in range(2) for rt in range(4)]
    cur_tr = [0]
    def tr(r, basereg, nlo, off):
        tag = ("A", r & ~3, cur_tr[0])
        if "notr" in opt and cur_tr[0] > 0: return
        w = 2 if off >= WINS[2] else (1 if off >= WINS[1] else 0)
        S.lds(f"ds_read_b64_tr_b16 v[{r}:{r+1}], v{basereg+nlo*w} offset:{off-WINS[w]}", tag)
    def tr_ops(bi):
        p, kl, s, b = blocks[bi]
        buf = AF + (bi % 2)*32
        ops = []
        if p < 2:
            base = lds_off(s, b)
            for j in range(4):
                for mat in range(2):
                    r = buf + (j*2+mat)*4
                    ops.append(lambda r=r, j=j, o=base+mat*1024: tr(r, vT+j, 4, o))
                    ops.append(lambda r=r, j=j, o=base+mat*1024+512: tr(r+2, vT+j, 4, o))
        else:
            for kk in range(2):
                base = lds_off(s, 2*b+kk)
                for j in range(2):
                    for mat in range(2):
                        r = buf + (kk*4+j*2+mat)*4
                        ops.append(lambda r=r, j=j, o=base+mat*2048: tr(r, vT2+j, 2, o))
                        ops.append(lambda r=r, j=j, o=base+mat*2048+256: tr(r+2, vT2+j, 2, o))
        return ops
    def mfma_list(bi):
        p, kl, s, b = blocks[bi]
        buf = AF + (bi % 2)*32
        L = []
        nj = 4 if p < 2 else 2
        nrt = 4 if p < 2 else 2
        for kk, ks in enumerate(kl):
            order = []
            if ks in (0, 17):
                for t in range(nj//2):
                    for rt in range(nrt):
                        for jj in range(2):
                            for mat in range(2): order.append((2*t+jj, mat, rt))
            else:
                for j in range(nj):
                    for mat in range(2):
                        for rt in range(nrt): order.append((j, mat, rt))
            for n, (j, mat, rt) in enumerate(order):
                d = acc(mat, j, rt); A = buf + (kk*4 + j*2+mat)*4
                c = "0" if ks == 0 else f"v[{d}:{d+3}]"
                L.append((f"v_mfma_f32_16x16x32_bf16 v[{d}:{d+3}], v[{A}:{A+3}], {xreg(ks,rt)}, {c}", (j//2, rt), ks, n, {("A", A, bi), ("x", ks, rt)}))
        return L
    def epi_ops(p, t, rt):
        ops = []
        g0, u0, g1, u1 = acc(0,2*t,rt), acc(1,2*t,rt), acc(0,2*t+1,rt), acc(1,2*t+1,rt)
        for r in range(4): ops.append(lambda r=r: S(f"v_mul_f32 v{g0+r}, v{g0+r}, v{u0+r}"))
        for r in range(4): ops.append(lambda r=r: S(f"v_mul_f32 v{g1+r}, v{g1+r}, v{u1+r}"))
        ops.append(lambda: S(f"v_cvt_pk_bf16_f32 v{u0}, v{g0}, v{g0+1}"))
        ops.append(lambda: S(f"v_cvt_pk_bf16_f32 v{u0+1}, v{g0+2}, v{g0+3}"))
        ops.append(lambda: S(f"v_cvt_pk_bf16_f32 v{u0+2}, v{g1}, v{g1+1}"))
        ops.append(lambda: S(f"v_cvt_pk_bf16_f32 v{u0+3}, v{g1+2}, v{g1+3}"))
        def st():
            so = f"s{60+2*p+t}" if p < 2 else "s35"
            vs = vS01 if rt < 2 else vS23
            if do_store:
                S.vmem(f"buffer_store_dwordx4 v[{u0}:{u0+3}], v{vs}, s[36:39], {so} offen offset:{(rt&1)*1024} {stflags}", ("S", p))
        ops.append(st)
        return ops
    nstamp = [0]
    def tstamp():
        if fine and nstamp[0] < 16:
            k = nstamp[0]
            r = 64+2*k if k < 8 else 88+2*(k-8)
            if k >= 15: r = 46
            S(f"s_memtime s[{r}:{r+1}]"); nstamp[0] += 1
    def stamp_reg(k):
        if k >= 15: return 46
        return 64+2*k if k < 8 else 88+2*(k-8)
    tstamp()
    def run(ops):
        prev_m0 = False
        for f in ops: f()
    pro = opt.split(",")
    PACE = int(pro[0]) if pro[0] else 4
    run(dma_ops(0)); run(xload_ops(0))
    run(dma_ops(1)); run(xload_ops(1))
    S(rest_setup)
    run(dma_ops(2)); run(xload_ops(2)); run(dma_ops(3))
    tstamp()
    S.wait_vm({("X",0)})
    run(xr_ops(0))
    S("s_barrier")
    tstamp()
    cur_tr[0] = 0
    run(tr_ops(0))
    pending_epi = []
    vq = []
    later = []
    next_dma = 4
    gslot = [0, 0]
    for bi in range(NB):
        p, kl, s, b = blocks[bi]
        M = mfma_list(bi)
        nm = len(M)
        cur_tr[0] = bi + 1
        sched = {}
        def at(slot, op): sched.setdefault(min(slot, nm-1), []).append(op)
        t = tr_ops(bi+1) if bi + 1 < NB else []
        t0 = 0
        if bi == last[s] and s + 1 < NST:
            t0 = 1
            def bar(s=s, bi=bi):
                nonlocal next_dma
                S.wait_vm({("W", s+1)})
                S.wait_ds_all()
                if "nobar" not in pro: S("s_barrier")
                while next_dma < NST and avail[next_dma] <= bi and first[next_dma] - bi <= 10:
                    vq.extend(dma_ops(next_dma)); next_dma += 1
            at(0, bar)
        if bi in (1,3,6,9,12,15,18,24,30,36,41): tstamp()
        span = nm - 4 - t0
        if p == 0 and (kl[0] % 2) == 1 and (kl[0]+1)//2 <= 8:
            xg = (kl[0]+1)//2
            r = xr_ops(xg)
            r[0:1] = [lambda f=r[0], xg=xg: (S.wait_vm({("X", xg)}), f())] if r else []
            t = t[:4] + r[:4] + t[4:8] + r[4:] + t[8:]
        if p == 0 and (kl[0] % 2) == 0 and kl[0]//2 + 3 <= 8:
            vq.extend(xload_ops(kl[0]//2 + 3))
        if bi == 22: vq.extend([(lambda l=l: S(l)) for l in late_setup.strip().split("\n")])
        for k, f in enumerate(t): at(t0 + (k*span)//len(t), f)
        for mi, (m, unit, ks, n, need) in enumerate(M):
            if ks == 0:
                lastq = max([k for k, e in enumerate(pending_epi) if e[2] == unit], default=-1)
                if lastq >= 0:
                    print("WARNING: forced flush of", lastq+1, "epi ops at", bi, mi)
                    for _ in range(lastq+1): pending_epi.pop(0)[1]()
                    S("s_nop 1")
            n0 = len(a.lines)
            S.wait_ds(need)
            S(m)
            nmf = len(a.lines)
            for f in sched.get(mi, []): f()
            cap = 3 if "cap2" not in pro else 2
            if len(pending_epi) > 30: cap += 1
            while pending_epi and pending_epi[0][0] <= len(a.lines) and len(a.lines) - n0 < cap:
                pending_epi.pop(0)[1]()
            gslot[0] += 1
            while vq and len(a.lines) - n0 < 3 and gslot[0] >= gslot[1] and not pending_epi:
                nv = len(S.vm)
                vq.pop(0)()
                if len(S.vm) > nv: gslot[1] = gslot[0] + PACE
            if ks == 17 and (n+1) % 4 == 0:
                tt, rt = unit
                for op in epi_ops(p, tt, rt): pending_epi.append((nmf + 8, op, unit))
    assert not vq and not later, (len(vq), len(later))
    S("s_nop 7")
    S("s_nop 1")
    while pending_epi: pending_epi.pop(0)[1]()
    tstamp()
    if fine:
        S("s_waitcnt vmcnt(0)")
        tstamp()
        a(f"""
        s_waitcnt lgkmcnt(0)
        s_add_u32 s36, s4, {stamp_off}
        s_addc_u32 s37, s5, 0
        s_mov_b32 s38, 0x10000
        s_mov_b32 s39, 0x20000
        s_lshl_b32 s26, s2, 8
        s_lshl_b32 s27, s17, 6
        s_add_u32 s26, s26, s27
        v_mov_b32 v8, s26
        """)
        for k in range(16): a(f"v_mov_b32 v{16+k}, s{stamp_reg(k)}")
        a(f"""
        v_cmp_eq_u32 vcc, 0, v{vt+1}
        s_and_saveexec_b64 s[44:45], vcc
        buffer_store_dwordx4 v[16:19], v8, s[36:39], 0 offen
        buffer_store_dwordx4 v[20:23], v8, s[36:39], 0 offen offset:16
        buffer_store_dwordx4 v[24:27], v8, s[36:39], 0 offen offset:32
        buffer_store_dwordx4 v[28:31], v8, s[36:39], 0 offen offset:48
        """)
    elif stamp:
        a(f"""
        s_waitcnt vmcnt(0)
        s_memrealtime s[42:43]
        s_waitcnt lgkmcnt(0)
        s_add_u32 s36, s4, {stamp_off}
        s_addc_u32 s37, s5, 0
        s_mov_b32 s38, 0x10000
        s_mov_b32 s39, 0x20000
        v_mov_b32 v4, 0
        v_mov_b32 v5, s40
        v_mov_b32 v6, s42
        v_mov_b32 v7, 0
        s_mul_i32 s26, s2, 64
        s_lshl_b32 s27, s17, 4
        s_add_u32 s26, s26, s27
        v_mov_b32 v8, s26
        v_cmp_eq_u32 vcc, 0, v{vt+1}
        s_and_saveexec_b64 s[44:45], vcc
        buffer_store_dwordx4 v[4:7], v8, s[36:39], 0 offen
        """)
    a(f"{name}_end:")
    a("s_endpgm")
    a.end_kernel(name, 512, accum=256)
    return G1_LDS

if __name__ == "__main__":
    import argparse
    ap = argparse.ArgumentParser()
    ap.add_argument("out"); ap.add_argument("--st", default=""); ap.add_argument("--nostore", action="store_true"); ap.add_argument("--fine", action="store_true"); ap.add_argument("--opt", default="")
    x = ap.parse_args()
    a = Asm()
    lds = gen_gemm1(a, "g1_kernel", stflags=x.st, do_store=not x.nostore, fine=x.fine, opt=x.opt)
    a.launch("g1_kernel", (256,1,1), (256,1,1), lds)
    open(x.out, "w").write(a.text())
```

```python
import sys
from asmlib import Asm

def gen_gemm2(a, name, D=5, do_mfma=True, do_lds=True, H_OFF=0x100000, stamp=True, nwaves=4, hnt='', wnt='', same='', combine=False, AT_OFF=0x1700000, G_OFF=0x1A00000):
    NW = nwaves
    NSTEP = 144 // NW
    assert NSTEP % D == 0 or True
    ACC = 0
    HB = 80
    AF = HB + D*20
    V = AF + 32
    vH0, vH1, vW0, vT0 = V, V+1, V+2, V+6
    vtmp = V+10
    NV = V + 16
    CA = NV; CG = NV + 20
    if combine: NV += 28
    a.begin_kernel(name)
    a(f"""
    s_cmp_ge_u32 s2, 234
    s_cbranch_scc1 {name}_end
    s_load_dwordx2 s[4:5], s[0:1], 128
    s_load_dwordx2 s[6:7], s[0:1], 96
    s_load_dwordx2 s[28:29], s[0:1], 112
    s_memrealtime s[40:41]
    s_and_b32 s12, s2, 7
    s_lshr_b32 s13, s2, 3
    s_mul_i32 s14, s12, 29
    s_min_u32 s15, s12, 2
    s_add_u32 s14, s14, s15
    s_add_u32 s14, s14, s13
    s_mul_i32 s15, s14, 7282
    s_lshr_b32 s15, s15, 16          ; mt = t/9  (t<234)
    s_mul_i32 s16, s15, 9
    s_sub_u32 s16, s14, s16          ; nt
    {"s_mov_b32 s15, 0" if "m" in same else ""}
    {"s_mov_b32 s16, 0" if "n" in same else ""}
    {"s_mov_b32 s15, s12" if "x" in same else ""}
    v_lshrrev_b32 v{vtmp}, 6, v0
    v_and_b32 v{vtmp+1}, 63, v0      ; lane
    s_nop 0
    v_readfirstlane_b32 s17, v{vtmp} ; wave
    s_waitcnt lgkmcnt(0)
    ; SRD H: s[8:11]
    s_mul_i32 s18, s15, 5120
    s_add_u32 s18, s18, {H_OFF}
    s_add_u32 s8, s4, s18
    s_addc_u32 s9, s5, 0
    s_mov_b32 s10, {144*131072}
    s_mov_b32 s11, 0x20000
    ; SRD W: s[20:23]
    s_lshl_b32 s18, s16, 7
    s_add_u32 s20, s6, s18
    s_addc_u32 s21, s7, 0
    s_sub_u32 s22, {4608*1152}, s18
    s_mov_b32 s23, 0x20000
    ; H voffsets
    v_lshlrev_b32 v{vH0}, 4, v{vtmp+1}
    v_add_u32 v{vH1}, 4096, v{vH0}
    v_lshrrev_b32 v{vtmp+2}, 3, v{vtmp+1}
    v_mul_u32_u24 v{vtmp+2}, 1152, v{vtmp+2}
    v_lshrrev_b32 v{vtmp+3}, 4, v{vtmp+1}
    v_lshlrev_b32 v{vtmp+3}, 1, v{vtmp+3}
    v_and_b32 v{vtmp+4}, 7, v{vtmp+1}
    v_xor_b32 v{vtmp+3}, v{vtmp+3}, v{vtmp+4}
    v_lshlrev_b32 v{vtmp+3}, 4, v{vtmp+3}
    v_add_u32 v{vW0}, v{vtmp+2}, v{vtmp+3}
    v_add_u32 v{vW0+1}, {8192}, v{vW0}
    v_add_u32 v{vW0+2}, {2*8192}, v{vW0}
    v_add_u32 v{vW0+3}, {3*8192}, v{vW0}
    v_lshrrev_b32 v{vtmp+2}, 2, v{vtmp+1}
    v_lshrrev_b32 v{vtmp+3}, 1, v{vtmp+2}
    v_and_b32 v{vtmp+3}, 3, v{vtmp+3}            ; g
    v_lshlrev_b32 v{vtmp+3}, 5, v{vtmp+3}        ; 2g*16
    v_lshlrev_b32 v{vtmp+2}, 7, v{vtmp+2}        ; row*128
    v_and_b32 v{vtmp+4}, 3, v{vtmp+1}            ; c
    v_lshlrev_b32 v{vtmp+4}, 3, v{vtmp+4}        ; c*8  (= (c>>1)*16 + (c&1)*8)
    v_add_u32 v{vtmp+2}, v{vtmp+2}, v{vtmp+4}
    s_mul_i32 s19, s17, {D*4096}
    v_add_u32 v{vtmp+2}, s19, v{vtmp+2}
    """)
    for j in range(4):
        a(f"v_xor_b32 v{vtmp+4}, {32*j}, v{vtmp+3}")
        a(f"v_add_u32 v{vT0+j}, v{vtmp+2}, v{vtmp+4}")
    if combine:
        a(f"""
        s_add_u32 s48, s4, {AT_OFF}
        s_addc_u32 s49, s5, 0
        s_mov_b32 s50, {576*4096}
        s_mov_b32 s51, 0x20000
        s_add_u32 s52, s4, {G_OFF}
        s_addc_u32 s53, s5, 0
        s_mov_b32 s54, 8192
        s_mov_b32 s55, 0x20000
        v_and_b32 v{vtmp+2}, 15, v{vtmp+1}
        v_lshrrev_b32 v{vtmp+3}, 4, v{vtmp+1}
        v_lshlrev_b32 v{vtmp+3}, 14, v{vtmp+3}
        v_lshl_add_u32 v{vtmp+3}, v{vtmp+2}, 1, v{vtmp+3}
        v_lshlrev_b32 v{vtmp+2}, 2, v{vtmp+2}
        s_lshl_b32 s26, s16, 18
        s_lshl_b32 s27, s17, 16
        s_add_u32 s26, s26, s27
        s_mul_i32 s27, s15, 160
        s_add_u32 s26, s26, s27
        s_mul_i32 s27, s15, 320
        """)
        for r in range(4):
            for i in range(5):
                a(f"buffer_load_short_d16_hi v{CA+4*i+r}, v{vtmp+3}, s[48:51], s26 offen offset:{32*i}")
            a(f"s_add_u32 s26, s26, 4096")
        for i in range(5):
            a(f"buffer_load_dword v{CG+i}, v{vtmp+2}, s[52:55], s27 offen offset:{64*i}")
    for i in range(80): a(f"v_mov_b32 v{ACC+i}, 0")
    a(f"""
    s_lshl_b32 s24, s17, 17
    s_mul_i32 s25, s17, 36864
    """)
    def issue(slot):
        hb = HB + slot*20
        a(f"s_add_u32 s26, s19, {slot*4096}")
        a(f"s_mov_b32 m0, s26")
        for i in range(4):
            a(f"buffer_load_dwordx4 v[{hb+4*i}:{hb+4*i+3}], v{vH0}, s[8:11], s24 offen offset:{1024*i} {hnt}")
        a(f"buffer_load_dwordx4 v[{hb+16}:{hb+19}], v{vH1}, s[8:11], s24 offen {hnt}")
        for i in range(4):
            a(f"buffer_load_dwordx4 v{vW0+i}, s[20:23], s25 offen offset:{1024*i} lds {wnt}")
        a(f"s_add_u32 s24, s24, {NW*131072}")
        a(f"s_add_u32 s25, s25, {NW*36864}")
    def trread(slot, buf):
        if not do_lds: return
        for j in range(4):
            r = AF + buf*16 + j*4
            a(f"ds_read_b64_tr_b16 v[{r}:{r+1}], v{vT0+j} offset:{slot*4096}")
            a(f"ds_read_b64_tr_b16 v[{r+2}:{r+3}], v{vT0+j} offset:{slot*4096+2048}")
    def mfmas(slot, buf, inter=None):
        hb = HB + slot*20
        n = 0
        for j in range(4):
            for i in range(5):
                r = ACC + (j*5+i)*4
                A = AF + buf*16 + j*4
                B = hb + 4*i
                if do_mfma:
                    a(f"v_mfma_f32_16x16x32_bf16 v[{r}:{r+3}], v[{A}:{A+3}], v[{B}:{B+3}], v[{r}:{r+3}]")
                n += 1
    for s in range(D): issue(s)
    a(f"s_waitcnt vmcnt({9*(D-1)})")
    trread(0, 0)
    for s in range(NSTEP):
        slot = s % D; buf = s % 2
        issued = min(NSTEP, s + D)
        if s + 1 < NSTEP:
            out_after = issued - (s + 2)
            a(f"s_waitcnt vmcnt({9*out_after})")
            trread((s+1) % D, (s+1) % 2)
            a(f"s_waitcnt lgkmcnt(8)" if do_lds else "s_nop 0")
        else:
            a(f"s_waitcnt lgkmcnt(0)")
        mfmas(slot, buf)
        if s + D < NSTEP:
            issue(slot)
    a("s_nop 7")
    a("s_barrier")
    if NW == 4 and do_mfma:
        a(f"v_lshlrev_b32 v{vtmp}, 4, v{vtmp+1}")
        a(f"s_mul_i32 s26, s17, 5120")
        a(f"v_add_u32 v{vtmp+2}, s26, v{vtmp}")
        a(f"v_add_u32 v{vtmp+3}, 40960, v{vtmp+2}")
        for o in range(4):
            lab = a.label("skipw")
            a(f"s_cmp_eq_u32 s17, {o}")
            a(f"s_cbranch_scc1 {lab}")
            for i in range(5):
                r = ACC + (o*5+i)*4
                a(f"ds_write_b128 v{vtmp+2+o//2}, v[{r}:{r+3}] offset:{(o%2)*20480 + i*1024}")
            a(f"{lab}:")
        for o in range(4):
            lab = a.label("skipm")
            a(f"s_cmp_lg_u32 s17, {o}")
            a(f"s_cbranch_scc1 {lab}")
            for i in range(20): a(f"v_mov_b32 v{HB+i}, v{ACC+o*20+i}")
            a(f"{lab}:")
        a("s_waitcnt lgkmcnt(0)")
        a("s_barrier")
        a(f"s_mul_i32 s26, s17, 20480")
        a(f"v_add_u32 v{vtmp+2}, s26, v{vtmp}")
        for d in range(1,4):
            a(f"s_add_u32 s27, s17, {d}")
            a(f"s_and_b32 s27, s27, 3")
            a(f"s_mul_i32 s27, s27, 5120")
            a(f"v_add_u32 v{vtmp+3}, s27, v{vtmp+2}")
            for i in range(5):
                r = ACC + ((d-1)*5+i)*4
                a(f"ds_read_b128 v[{r}:{r+3}], v{vtmp+3} offset:{i*1024}")
        a("s_waitcnt lgkmcnt(0)")
        for i in range(20):
            a(f"v_add_f32 v{HB+i}, v{HB+i}, v{ACC+i}")
            a(f"v_add_f32 v{ACC+20+i}, v{ACC+20+i}, v{ACC+40+i}")
        for i in range(20):
            a(f"v_add_f32 v{HB+i}, v{HB+i}, v{ACC+20+i}")
        a(f"""
        s_mov_b32 s32, s28
        s_mov_b32 s33, s29
        s_mov_b32 s34, {2048*1152}
        s_mov_b32 s35, 0x20000
        v_and_b32 v{vtmp+2}, 15, v{vtmp+1}
        v_mul_u32_u24 v{vtmp+2}, 1152, v{vtmp+2}
        v_lshrrev_b32 v{vtmp+3}, 4, v{vtmp+1}
        v_lshlrev_b32 v{vtmp+3}, 3, v{vtmp+3}
        v_add_u32 v{vtmp+2}, v{vtmp+2}, v{vtmp+3}
        s_mul_i32 s26, s15, {80*1152}
        s_lshl_b32 s27, s16, 7
        s_add_u32 s26, s26, s27
        s_lshl_b32 s27, s17, 5
        s_add_u32 s26, s26, s27
        v_add_u32 v{vtmp+2}, s26, v{vtmp+2}
        """)
        if combine:
            a("s_mov_b32 s30, 0x3f803f80")
            for i in range(5):
                a(f"v_sub_f32 v{CG+5}, 1.0, v{CG+i}")
                a(f"v_cvt_pk_bf16_f32 v{CG+5}, v{CG+5}, v{CG+5}")
                a(f"v_lshlrev_b32 v{CG+5}, 16, v{CG+5}")
                for r in range(4):
                    b = HB+4*i+r; c = CA+4*i+r
                    a(f"v_cvt_pk_bf16_f32 v{b}, v{b}, v{b}")
                    a(f"v_lshlrev_b32 v{b}, 16, v{b}")
                    a(f"v_mul_f32 v{b}, v{b}, v{CG+5}")
                    a(f"v_mul_f32 v{c}, v{c}, v{CG+i}")
                    a(f"v_cvt_pk_bf16_f32 v{b}, v{b}, v{c}")
                    a(f"v_dot2_f32_bf16 v{b}, v{b}, s30, 0")
            a("s_nop 2")
        for i in range(5):
            a(f"v_cvt_pk_bf16_f32 v{ACC+2*i}, v{HB+4*i}, v{HB+4*i+1}")
            a(f"v_cvt_pk_bf16_f32 v{ACC+2*i+1}, v{HB+4*i+2}, v{HB+4*i+3}")
        for i in range(5):
            a(f"buffer_store_dwordx2 v[{ACC+2*i}:{ACC+2*i+1}], v{vtmp+2}, s[32:35], 0 offen")
            if i < 4: a(f"v_add_u32 v{vtmp+2}, {16*1152}, v{vtmp+2}")
    if stamp:
        a(f"""
        s_waitcnt vmcnt(0)
        s_memrealtime s[42:43]
        s_waitcnt lgkmcnt(0)
        s_mov_b32 s36, s4
        s_mov_b32 s37, s5
        s_mov_b32 s38, 0x100000
        s_mov_b32 s39, 0x20000
        v_mov_b32 v4, 0
        v_mov_b32 v5, s40
        v_mov_b32 v6, s42
        v_mov_b32 v7, 0
        s_mul_i32 s26, s2, {NW*16}
        s_lshl_b32 s27, s17, 4
        s_add_u32 s26, s26, s27
        v_mov_b32 v8, s26
        v_cmp_eq_u32 vcc, 0, v{vtmp+1}
        s_and_saveexec_b64 s[44:45], vcc
        buffer_store_dwordx4 v[4:7], v8, s[36:39], 0 offen
        """)
    a(f"{name}_end:")
    a("s_endpgm")
    a.end_kernel(name, NV)
    return NV, NW*D*4096

if __name__ == "__main__":
    import argparse
    ap = argparse.ArgumentParser()
    ap.add_argument("out"); ap.add_argument("-D", type=int, default=5)
    ap.add_argument("--nomfma", action="store_true"); ap.add_argument("--nolds", action="store_true")
    ap.add_argument("--nw", type=int, default=4); ap.add_argument("--lds", type=int, default=0)
    ap.add_argument("--same", default=""); ap.add_argument("--hnt", default=""); ap.add_argument("--wnt", default="")
    x = ap.parse_args()
    a = Asm()
    nv, lds = gen_gemm2(a, "g2_kernel", D=x.D, do_mfma=not x.nomfma, do_lds=not x.nolds, nwaves=x.nw, hnt=x.hnt, wnt=x.wnt, same=x.same)
    lds = max(lds, 81920, x.lds)
    a.launch("g2_kernel", (234,1,1), (64*x.nw,1,1), lds)
    open(x.out, "w").write(a.text())
    print("vgprs", nv, "lds", lds)
```

```python
import sys, math, struct
from asmlib import Asm

XT_OFF = 0x1400000
AT_OFF = 0x1700000
G_OFF  = 0x1A00000
LOG2E = 1.4426950408889634
def f32(x): return struct.unpack("<I", struct.pack("<f", x))[0]
def f32v(x): return struct.unpack("<f", struct.pack("<f", x))[0]

def emit_xt(a, vlane, vt, vd, s_x, s_xt, s_tile, s_row0, st0, st1, lds_base, sc=""):
    a(f"""
    v_lshrrev_b32 v{vt}, 1, v{vlane}
    v_mul_u32_u24 v{vt}, 1152, v{vt}
    v_and_b32 v{vt+1}, 1, v{vlane}
    v_lshlrev_b32 v{vt+1}, 4, v{vt+1}
    v_add_u32 v{vt}, v{vt}, v{vt+1}
    s_mul_i32 s{st0}, s{s_row0}, 1152
    s_lshl_b32 s{st1}, s{s_tile}, 5
    s_add_u32 s{st0}, s{st0}, s{st1}
    """)
    for k in range(8):
        a(f"s_mov_b32 m0, {lds_base + k*1024}")
        if k: a(f"s_add_u32 s{st0}, s{st0}, {32*1152}")
        else: a("s_nop 0")
        a(f"buffer_load_dwordx4 v{vt}, s[{s_x}:{s_x+3}], s{st0} offen lds")
    a(f"""
    v_lshrrev_b32 v{vt}, 4, v{vlane}
    v_and_b32 v{vt+1}, 15, v{vlane}
    v_lshlrev_b32 v{vd}, 8, v{vt}
    v_lshlrev_b32 v{vd+1}, 3, v{vt+1}
    v_lshlrev_b32 v{vt}, 4, v{vt}
    v_lshlrev_b32 v{vt+1}, 12, v{vt+1}
    v_add_u32 v{vt}, v{vt}, v{vt+1}
    v_add_u32 v{vt+1}, v{vd}, v{vd+1}
    s_lshl_b32 s{st0}, s{s_tile}, 16
    s_lshl_b32 s{st1}, s{s_row0}, 1
    s_add_u32 s{st0}, s{st0}, s{st1}
    """)
    a("s_waitcnt vmcnt(0)")
    for k in range(8):
        for h in range(2):
            r = vd + 4*k + 2*h
            a(f"ds_read_b64_tr_b16 v[{r}:{r+1}], v{vt+1} offset:{lds_base + k*1024 + h*128}")
    for k in range(8):
        a(f"s_waitcnt lgkmcnt({14-2*k})")
        a(f"buffer_store_dwordx4 v[{vd+4*k}:{vd+4*k+3}], v{vt}, s[{s_xt}:{s_xt+3}], s{st0} offen offset:{k*64} {sc}")

def emit_g_load(a, vlane, vt, vx, vw, s_x, s_gw, s_row0, st0):
    a(f"""
    v_lshrrev_b32 v{vt}, 3, v{vlane}
    v_mul_u32_u24 v{vt}, 1152, v{vt}
    v_and_b32 v{vt+1}, 7, v{vlane}
    v_lshlrev_b32 v{vt+1}, 4, v{vt+1}
    v_add_u32 v{vt}, v{vt}, v{vt+1}
    s_mul_i32 s{st0}, s{s_row0}, 1152
    """)
    for k in range(9):
        a(f"buffer_load_dwordx4 v[{vx+4*k}:{vx+4*k+3}], v{vt}, s[{s_x}:{s_x+3}], s{st0} offen offset:{k*128}")
        a(f"buffer_load_dwordx4 v[{vw+4*k}:{vw+4*k+3}], v{vt+1}, s[{s_gw}:{s_gw+3}], 0 offen offset:{k*128}")

def emit_g_compute(a, vlane, vt, vx, vw, s_g, s_row0, st0, sones, smask):
    acc = vt + 8
    a(f"v_mov_b32 v{acc}, 0")
    a(f"v_mov_b32 v{acc+1}, 0")
    for k in range(36):
        t = vt + 4*(k & 1)
        a(f"""
        v_lshlrev_b32 v{t}, 16, v{vx+k}
        v_and_b32 v{t+1}, s{smask}, v{vx+k}
        v_lshlrev_b32 v{t+2}, 16, v{vw+k}
        v_and_b32 v{t+3}, s{smask}, v{vw+k}
        v_pk_mul_f32 v[{t}:{t+1}], v[{t}:{t+1}], v[{t+2}:{t+3}]
        v_cvt_pk_bf16_f32 v{t}, v{t}, v{t+1}
        v_dot2_f32_bf16 v{acc+(k&1)}, v{t}, s{sones}, v{acc+(k&1)}
        """)
    a(f"""
    s_nop 2
    v_add_f32 v{acc}, v{acc}, v{acc+1}
    s_nop 1
    v_add_f32_dpp v{acc}, v{acc}, v{acc} quad_perm:[1,0,3,2] row_mask:0xf bank_mask:0xf
    s_nop 1
    v_add_f32_dpp v{acc}, v{acc}, v{acc} quad_perm:[2,3,0,1] row_mask:0xf bank_mask:0xf
    s_nop 1
    v_add_f32_dpp v{acc}, v{acc}, v{acc} row_half_mirror row_mask:0xf bank_mask:0xf
    v_cvt_pk_bf16_f32 v{acc}, v{acc}, v{acc}
    v_lshlrev_b32 v{acc}, 16, v{acc}
    v_mul_f32 v{acc}, {-LOG2E}, v{acc}
    v_exp_f32 v{acc}, v{acc}
    s_nop 0
    v_add_f32 v{acc}, 1.0, v{acc}
    v_rcp_f32 v{acc}, v{acc}
    s_nop 0
    v_cvt_pk_bf16_f32 v{acc}, v{acc}, v{acc}
    v_lshlrev_b32 v{acc}, 16, v{acc}
    v_lshrrev_b32 v{vt}, 3, v{vlane}
    v_lshlrev_b32 v{vt}, 2, v{vt}
    s_lshl_b32 s{st0}, s{s_row0}, 2
    buffer_store_dword v{acc}, v{vt}, s[{s_g}:{s_g+3}], s{st0} offen
    """)

def gen_prep(a, name):
    a.begin_kernel(name)
    a(f"""
    s_cmp_ge_u32 s2, 256
    s_cbranch_scc1 {name}_end
    s_load_dwordx2 s[4:5], s[0:1], 128
    s_load_dwordx2 s[6:7], s[0:1], 0
    s_load_dwordx2 s[28:29], s[0:1], 104
    s_and_b32 s12, s2, 31
    s_lshr_b32 s13, s2, 5
    s_lshl_b32 s13, s13, 8
    s_lshl_b32 s14, s2, 3
    s_mov_b32 s30, 0x3f803f80
    s_mov_b32 s31, 0xffff0000
    s_waitcnt lgkmcnt(0)
    s_mov_b32 s8, s6
    s_mov_b32 s9, s7
    s_mov_b32 s10, {2048*1152}
    s_mov_b32 s11, 0x20000
    s_add_u32 s16, s4, {XT_OFF}
    s_addc_u32 s17, s5, 0
    s_mov_b32 s18, {576*4096}
    s_mov_b32 s19, 0x20000
    s_mov_b32 s20, s28
    s_mov_b32 s21, s29
    s_mov_b32 s22, 1152
    s_mov_b32 s23, 0x20000
    s_add_u32 s24, s4, {G_OFF}
    s_addc_u32 s25, s5, 0
    s_mov_b32 s26, 8192
    s_mov_b32 s27, 0x20000
    """)
    emit_g_load(a, 0, 2, 48, 84, 8, 20, 14, 32)
    emit_xt(a, 0, 4, 8, 8, 16, 12, 13, 32, 33, 0)
    a(f"s_cmp_ge_u32 s12, 4")
    a(f"s_cbranch_scc1 {name}_skip")
    a(f"s_add_u32 s12, s12, 32")
    emit_xt(a, 0, 4, 8, 8, 16, 12, 13, 32, 33, 0)
    a(f"{name}_skip:")
    emit_g_compute(a, 0, 120, 48, 84, 24, 14, 32, 30, 31)
    a(f"{name}_end:")
    a("s_endpgm")
    a.end_kernel(name, 132)

SCR_PITCH = 144
SCR_SIZE = 64*SCR_PITCH
TAB_PITCH = 1600
def emit_kgen_load(a, vlane, vp, vt, sp, s_d, st0):
    a(f"""
    s_lshl_b32 s{st0}, s{s_d}, 8
    v_lshlrev_b32 v{vt}, 2, v{vlane}
    v_add_u32 v{vt}, s{st0}, v{vt}
    s_lshl_b32 s{st0}, s{s_d}, 1
    v_mov_b32 v{vt+1}, s{st0}
    v_mov_b32 v{vp+6}, 0
    """)
    a(f"global_load_short_d16_hi v{vp+6}, v{vt+1}, s[{sp+12}:{sp+13}]")
    for k in range(6):
        a(f"global_load_dword v{vp+k}, v{vt}, s[{sp+2*k}:{sp+2*k+1}]")

def emit_kgen(a, vlane, vp, V, s_scr, s_tab, smask, stamp=None):
    assert V % 4 == 0
    nxt = [V]
    def alloc(n, al=2):
        r = (nxt[0] + al - 1)//al*al; nxt[0] = r + n; return r
    vW, vR, vT1, vT2 = alloc(1,1), alloc(1,1), alloc(1,1), alloc(1,1)
    vT0 = alloc(1,1)
    dt = alloc(1,1)
    tmp = alloc(8, 2)
    lam = [alloc(2), alloc(2)]
    Wc = [alloc(2), alloc(2)]
    E1, E2, E4, S8, F = [[alloc(2), alloc(2)] for _ in range(5)]
    val = [[alloc(2) for r in range(16)] for z in range(2)]
    Rk = [alloc(2), alloc(2)]
    stg = [alloc(16, 4), alloc(16, 4)]
    QF = alloc(32, 4)
    AF = alloc(32, 4)
    D = [alloc(4, 4) for _ in range(6)]
    def cmul2(dst, x, y):
        for z in range(2): a(f"v_pk_mul_f32 v[{dst[z]}:{dst[z]+1}], v[{x[z]}:{x[z]+1}], v[{y[z]}:{y[z]+1}] op_sel_hi:[0,1]")
        for z in range(2): a(f"v_pk_fma_f32 v[{dst[z]}:{dst[z]+1}], v[{x[z]}:{x[z]+1}], v[{y[z]}:{y[z]+1}], v[{dst[z]}:{dst[z]+1}] op_sel:[1,1,0] op_sel_hi:[1,0,1] neg_lo:[1,0,0]")
    def row(r): return [val[0][r], val[1][r]]
    a(f"""
    v_mul_u32_u24 v{vW}, {SCR_PITCH}, v{vlane}
    v_add_u32 v{vW}, s{s_scr}, v{vW}
    v_lshrrev_b32 v{tmp}, 4, v{vlane}
    v_and_b32 v{tmp+1}, 15, v{vlane}
    v_mul_u32_u24 v{vR}, {2*SCR_PITCH}, v{tmp}
    v_lshlrev_b32 v{tmp+2}, 3, v{tmp+1}
    v_add_u32 v{vR}, v{vR}, v{tmp+2}
    v_add_u32 v{vR}, s{s_scr}, v{vR}
    v_lshrrev_b32 v{tmp+2}, 1, v{tmp}
    v_lshlrev_b32 v{tmp+2}, 8, v{tmp+2}
    v_and_b32 v{tmp+3}, 1, v{tmp}
    v_lshlrev_b32 v{tmp+4}, 3, v{tmp+3}
    v_add_u32 v{tmp+2}, v{tmp+2}, v{tmp+4}
    v_lshlrev_b32 v{tmp+4}, 4, v{tmp+1}
    v_add_u32 v{tmp+2}, v{tmp+2}, v{tmp+4}
    v_add_u32 v{vT0}, s{s_tab}, v{tmp+2}
    ; tile1: q<2: (256+64q+4j)*2, +4 ; q>=2: (384+64(q-2)+2j)*2, +64
    v_lshlrev_b32 v{tmp+2}, 7, v{tmp}
    v_lshlrev_b32 v{tmp+4}, 3, v{tmp+1}
    v_cmp_gt_u32 vcc, 2, v{tmp}
    v_lshlrev_b32 v{tmp+5}, 2, v{tmp+1}
    v_mov_b32 v{tmp+6}, 64
    v_cndmask_b32 v{tmp+4}, v{tmp+5}, v{tmp+4}, vcc
    v_cndmask_b32 v{tmp+6}, v{tmp+6}, 4, vcc
    v_add_u32 v{tmp+2}, v{tmp+2}, v{tmp+4}
    v_add_u32 v{vT1}, s{s_tab}, v{tmp+2}
    v_add_u32 v{tmp+7}, v{vT1}, v{tmp+6}
    v_mov_b32 v{Rk[0]}, v{tmp+7}
    v_lshlrev_b32 v{tmp+2}, 5, v{tmp+1}
    v_lshlrev_b32 v{tmp+4}, 3, v{tmp}
    v_add_u32 v{tmp+2}, v{tmp+2}, v{tmp+4}
    v_add_u32 v{vT2}, s{s_tab}, v{tmp+2}
    """)
    vT1b = alloc(1, 1)
    a(f"v_mov_b32 v{vT1b}, v{Rk[0]}")
    a(f"""
    v_mov_b32 v{tmp}, 0
    v_mov_b32 v{tmp+1}, 0
    v_mov_b32 v{tmp+2}, s{s_tab}
    ds_write_b64 v{tmp+2}, v[{tmp}:{tmp+1}] offset:8
    """)
    a("KGEN_WAIT_PARAMS")
    if stamp: stamp()
    Lh = f32v(LOG2E); Ll = LOG2E - Lh
    a(f"""
    v_mul_f32 v{tmp}, 0x{f32(Lh):08x}, v{vp+6}
    v_mov_b32 v{tmp+2}, 0x{f32(Lh):08x}
    v_fma_f32 v{tmp+1}, v{vp+6}, v{tmp+2}, -v{tmp}
    v_mov_b32 v{tmp+2}, 0x{f32(Ll):08x}
    v_exp_f32 v{tmp}, v{tmp}
    v_fma_f32 v{tmp+1}, v{vp+6}, v{tmp+2}, v{tmp+1}
    v_mul_f32 v{tmp+1}, 0x{f32(math.log(2)):08x}, v{tmp+1}
    v_fma_f32 v{tmp}, v{tmp}, v{tmp+1}, v{tmp}
    v_cvt_pk_bf16_f32 v{tmp}, v{tmp}, v{tmp}
    v_lshlrev_b32 v{dt}, 16, v{tmp}
    """)
    for (dst, k) in ((lam, 0), (E1, 2), (E2, 4)):
        for c in range(2):
            a(f"v_lshlrev_b32 v{dst[0]+c}, 16, v{vp+k+c}")
            a(f"v_and_b32 v{dst[1]+c}, s{smask}, v{vp+k+c}")
    a(f"v_mov_b32 v{tmp}, 0x{f32(LOG2E):08x}")
    a(f"v_mov_b32 v{tmp+1}, 0x{f32(0.5/math.pi):08x}")
    for z in range(2):
        a(f"v_pk_mul_f32 v[{E1[z]}:{E1[z]+1}], v[{E1[z]}:{E1[z]+1}], v[{dt & ~1}:{(dt & ~1)+1}] op_sel:[0,{dt&1}] op_sel_hi:[1,{dt&1}]")
        a(f"v_pk_mul_f32 v[{lam[z]}:{lam[z]+1}], v[{lam[z]}:{lam[z]+1}], v[{dt & ~1}:{(dt & ~1)+1}] op_sel:[0,{dt&1}] op_sel_hi:[1,{dt&1}]")
    cmul2(Wc, E2, E1)
    for z in range(2):
        a(f"v_pk_mul_f32 v[{lam[z]}:{lam[z]+1}], v[{lam[z]}:{lam[z]+1}], v[{tmp}:{tmp+1}]")
    def direct(dst, m, conj=False):
        for z in range(2):
            t = tmp + 4*z
            if m != 1:
                a(f"v_mul_f32 v{t}, 0x{f32(float(m)):08x}, v{lam[z]}")
                a(f"v_mul_f32 v{t+1}, 0x{f32(float(-m if conj else m)):08x}, v{lam[z]+1}")
                a(f"v_exp_f32 v{t}, v{t}")
                a(f"v_fract_f32 v{t+1}, v{t+1}")
            else:
                a(f"v_exp_f32 v{t}, v{lam[z]}")
                a(f"v_fract_f32 v{t+1}, v{lam[z]+1}")
        for z in range(2):
            t = tmp + 4*z
            a(f"v_cos_f32 v{t+2}, v{t+1}")
            a(f"v_sin_f32 v{t+3}, v{t+1}")
        a("s_nop 0")
        for z in range(2):
            t = tmp + 4*z
            a(f"v_pk_mul_f32 v[{dst[z]}:{dst[z]+1}], v[{t+2}:{t+3}], v[{t}:{t+1}] op_sel_hi:[1,0]")
    nst = [0]
    def flush(r0, n=8, half=0):
        s = stg[nst[0] % 2]; nst[0] += 1
        for z in range(2):
            for c in range(2):
                for k in range(0, n, 2):
                    r1 = r0 + k + 1 if k + 1 < n else r0 + k
                    a(f"v_cvt_pk_bf16_f32 v{s + z*8 + c*4 + k//2}, v{val[z][r0+k]+c}, v{val[z][r1]+c}")
                o = z*64 + c*32 + half*16
                if n == 8: a(f"ds_write_b128 v{vW}, v[{s+z*8+c*4}:{s+z*8+c*4+3}] offset:{o}")
                else: a(f"ds_write_b32 v{vW}, v{s+z*8+c*4} offset:{o}")
    def rd(dst):
        for s in range(8):
            for h in range(2):
                r = dst + 4*s + 2*h
                a(f"ds_read_b64_tr_b16 v[{r}:{r+1}], v{vR} offset:{s*8*SCR_PITCH + h*SCR_PITCH}")
    def mm(d0, d1, A, B):
        for s in range(8):
            d = d0 if s % 2 == 0 else d1
            c = "0" if s < 2 else f"v[{d}:{d+3}]"
            a(f"v_mfma_f32_16x16x32_bf16 v[{d}:{d+3}], v[{A+4*s}:{A+4*s+3}], v[{B+4*s}:{B+4*s+3}], {c}")
    direct(row(1), 8, conj=True)
    for z in range(2):
        a(f"v_mov_b32 v{val[z][0]}, 1.0")
        a(f"v_mov_b32 v{val[z][0]+1}, 0")
    cmul2(row(2), row(1), row(1)); cmul2(row(3), row(2), row(1)); cmul2(row(4), row(2), row(2))
    cmul2(row(5), row(4), row(1)); cmul2(row(6), row(4), row(2)); cmul2(row(7), row(4), row(3)); cmul2(row(8), row(4), row(4))
    flush(0, 8, 0)
    for r in range(9, 16): cmul2(row(r), row(8), row(r-8))
    flush(8, 8, 1)
    rd(QF)
    direct(E1, 1); direct(F, 128)
    cmul2(E2, E1, E1); cmul2(E4, E2, E2)
    for z in range(2):
        a(f"v_mov_b32 v{val[z][0]}, v{Wc[z]}")
        a(f"v_mov_b32 v{val[z][0]+1}, v{Wc[z]+1}")
    cmul2(row(1), row(0), E1); cmul2(row(2), row(0), E2); cmul2(row(3), row(1), E2)
    for r in range(4): cmul2(row(4+r), row(r), E4)
    flush(0, 8, 0)
    for r in range(8): cmul2(row(8+r), row(r), F)
    flush(8, 8, 1)
    rd(AF)
    cmul2(row(0), row(8), F)
    cmul2(row(4), row(0), F)
    cmul2(row(1), row(0), E2); cmul2(row(2), row(0), E4); cmul2(row(3), row(2), E2)
    cmul2(row(5), row(4), E2); cmul2(row(6), row(4), E4); cmul2(row(7), row(6), E2)
    cmul2(row(8), row(4), F)
    cmul2(row(10), row(8), F); cmul2(row(12), row(10), F); cmul2(row(14), row(12), F)
    a("s_waitcnt lgkmcnt(0)")
    mm(D[0], D[1], AF, QF)
    flush(0, 8, 0)
    for r in (8, 10, 12, 14): cmul2(row(r+1), row(r), E4)
    flush(8, 8, 1)
    rd(AF)
    cmul2(row(0), row(14), F)
    for r in range(1, 9): cmul2(row(r), row(r-1), F)
    a(f"v_pk_add_f32 v[{D[0]}:{D[0]+1}], v[{D[0]}:{D[0]+1}], v[{D[1]}:{D[1]+1}]")
    a(f"v_pk_add_f32 v[{D[0]+2}:{D[0]+3}], v[{D[0]+2}:{D[0]+3}], v[{D[1]+2}:{D[1]+3}]")
    a(f"v_cvt_pk_bf16_f32 v{D[0]}, v{D[0]}, v{D[0]+1}")
    a(f"v_cvt_pk_bf16_f32 v{D[0]+1}, v{D[0]+2}, v{D[0]+3}")
    a(f"ds_write_b64 v{vT0}, v[{D[0]}:{D[0]+1}] offset:16")
    a("s_waitcnt lgkmcnt(1)")
    mm(D[2], D[3], AF, QF)
    flush(0, 8, 0)
    flush(8, 1, 1)
    rd(AF)
    a("s_nop 3")
    a(f"v_pk_add_f32 v[{D[2]}:{D[2]+1}], v[{D[2]}:{D[2]+1}], v[{D[3]}:{D[3]+1}]")
    a(f"v_pk_add_f32 v[{D[2]+2}:{D[2]+3}], v[{D[2]+2}:{D[2]+3}], v[{D[3]+2}:{D[3]+3}]")
    a(f"v_cvt_pk_bf16_f32 v{D[2]}, v{D[2]}, v{D[2]+1}")
    a(f"v_cvt_pk_bf16_f32 v{D[2]+1}, v{D[2]+2}, v{D[2]+3}")
    a(f"ds_write_b32 v{vT1}, v{D[2]} offset:{16+512}")
    a(f"ds_write_b32 v{vT1b}, v{D[2]+1} offset:{16+512}")
    a("s_waitcnt lgkmcnt(2)")
    mm(D[4], D[5], QF, AF)
    a("s_nop 7")
    a(f"v_pk_add_f32 v[{D[4]}:{D[4]+1}], v[{D[4]}:{D[4]+1}], v[{D[5]}:{D[5]+1}]")
    a(f"v_pk_add_f32 v[{D[4]+2}:{D[4]+3}], v[{D[4]+2}:{D[4]+3}], v[{D[5]+2}:{D[5]+3}]")
    a(f"v_cvt_pk_bf16_f32 v{D[4]}, v{D[4]}, v{D[4]+1}")
    a(f"v_cvt_pk_bf16_f32 v{D[4]+1}, v{D[4]+2}, v{D[4]+3}")
    a(f"ds_write_b64 v{vT2}, v[{D[4]}:{D[4]+1}] offset:{16+1024}")
    return nxt[0]

CP_PITCH = 4160
def gen_ssm(a, name, stamp_off=0, fine=True, dbg=False):
    SCR = 0
    TAB = 3*SCR_SIZE
    CP = 32768
    UB = CP + 4*CP_PITCH
    RED = 54272
    LDS = RED + 24576
    nstamp = [0]
    def tstamp():
        if fine and nstamp[0] < 16:
            k = nstamp[0]; a(f"s_memtime s[{64+2*k}:{65+2*k}]"); nstamp[0] += 1
    a.begin_kernel(name)
    a(f"""
    s_cmp_ge_u32 s2, 256
    s_cbranch_scc1 {name}_end
    s_load_dwordx2 s[4:5], s[0:1], 128
    s_load_dwordx16 s[36:51], s[0:1], 8
    """)
    tstamp()
    a(f"""
    v_lshrrev_b32 v2, 6, v0
    v_and_b32 v1, 63, v0
    s_mov_b32 s31, 0xffff0000
    s_mov_b32 s30, 0x3f803f80
    v_readfirstlane_b32 s17, v2
    s_cmp_lt_u32 s2, 64
    s_cselect_b32 s16, 3, 2          ; nch
    s_lshl_b32 s18, s17, 8
    s_add_u32 s18, s18, s2
    s_mul_i32 s19, s17, {SCR_SIZE}
    s_mul_i32 s20, s17, {TAB_PITCH}
    s_add_u32 s20, s20, {TAB}
    s_waitcnt lgkmcnt(0)
    s_add_u32 s8, s4, {XT_OFF}
    s_addc_u32 s9, s5, 0
    s_mov_b32 s10, {576*4096}
    s_mov_b32 s11, 0x20000
    s_add_u32 s12, s4, {AT_OFF}
    s_addc_u32 s13, s5, 0
    s_mov_b32 s14, {576*4096}
    s_mov_b32 s15, 0x20000
    s_cmp_ge_u32 s17, s16
    s_cbranch_scc1 {name}_kdone
    """)
    emit_kgen_load(a, 1, 8, 2, 36, 18, 21)
    n0 = len(a.lines)
    top = emit_kgen(a, 1, 8, 16, 19, 20, 31, stamp=tstamp)
    for i in range(n0, len(a.lines)):
        if "KGEN_WAIT_PARAMS" in a.lines[i]: a.lines[i] = "    s_waitcnt vmcnt(0)"
    print("kgen top vgpr", top, "instrs", len(a.lines) - n0)
    a(f"{name}_kdone:")
    tstamp()
    GA = 8
    vA, vB, vU, vCW, vRW, vRR, vO, vUo = 20, 21, 22, 23, 24, 25, 26, 27
    UR = 28
    DS = 40
    tmp = 44
    EX = 56
    AFr = 72; BFr = 104; ACC = 136; RR = 168
    a(f"""
    v_lshlrev_b32 v{vU}, 4, v0
    s_lshl_b32 s21, s2, 12
    buffer_load_dwordx4 v[{UR}:{UR+3}], v{vU}, s[8:11], s21 offen
    s_add_u32 s21, s21, {256*4096}
    buffer_load_dwordx4 v[{UR+4}:{UR+7}], v{vU}, s[8:11], s21 offen
    s_add_u32 s21, s21, {256*4096}
    buffer_load_dwordx4 v[{UR+8}:{UR+11}], v{vU}, s[8:11], s21 offen
    s_lshl_b32 s21, s2, 1
    v_mov_b32 v{tmp}, s21
    v_mov_b32 v{DS}, 0
    v_mov_b32 v{DS+1}, 0
    v_mov_b32 v{DS+2}, 0
    global_load_short_d16_hi v{DS}, v{tmp}, s[50:51]
    global_load_short_d16_hi v{DS+1}, v{tmp}, s[50:51] offset:512
    s_cmp_ge_u32 s2, 64
    s_cbranch_scc1 {name}_nod2
    global_load_short_d16_hi v{DS+2}, v{tmp}, s[50:51] offset:1024
    {name}_nod2:
    v_lshlrev_b32 v{tmp}, 3, v0
    v_mov_b32 v{tmp+4}, 128
    """)
    for e in range(11):
        a(f"""
        v_add_u32 v{tmp+1}, {e-3}, v{tmp}
        v_cvt_f32_i32 v{tmp+2}, v{tmp+1}
        v_cvt_pk_bf16_f32 v{tmp+2}, v{tmp+2}, v{tmp+2}
        v_ashrrev_i32 v{tmp+2}, 16, v{tmp+2}
        v_add_u32 v{tmp+2}, {-17024 & 0xffffffff}, v{tmp+2}
        v_med3_i32 v{tmp+2}, v{tmp+2}, v{tmp+1}, v{tmp+4}
        v_lshlrev_b32 v{tmp+2}, 1, v{tmp+2}
        v_add_u32 v{GA+e}, {TAB+16}, v{tmp+2}
        """)
    a(f"""
    v_bfe_u32 v{tmp}, v1, 2, 2
    v_mul_u32_u24 v{tmp}, {CP_PITCH}, v{tmp}
    v_lshrrev_b32 v{tmp+1}, 4, v1
    v_lshlrev_b32 v{tmp+2}, 4, v{tmp+1}
    v_sub_u32 v{tmp}, v{tmp}, v{tmp+2}
    v_and_b32 v{tmp+3}, 3, v1
    v_lshlrev_b32 v{tmp+3}, 3, v{tmp+3}
    v_add_u32 v{tmp}, v{tmp}, v{tmp+3}
    s_lshl_b32 s21, s17, 7
    s_add_u32 s22, s21, {56 + CP}
    v_add_u32 v{vA}, s22, v{tmp}
    v_and_b32 v{tmp+3}, 15, v1
    v_lshlrev_b32 v{tmp+4}, 5, v{tmp+3}
    v_add_u32 v{tmp+4}, v{tmp+4}, v{tmp+2}
    s_sub_u32 s22, {UB + 384}, s21
    v_add_u32 v{vB}, s22, v{tmp+4}
    v_add_u32 v{vCW}, {CP+32}, v{vU}
    v_lshlrev_b32 v{vRW}, 4, v1
    s_mul_i32 s22, s17, 6144
    s_add_u32 s22, s22, {RED}
    v_add_u32 v{vRR}, s22, v{vRW}
    v_add_u32 v{vRW}, {RED}, v{vRW}
    v_lshlrev_b32 v{tmp+5}, 3, v{tmp+1}
    v_lshlrev_b32 v{tmp+4}, 5, v{tmp+3}
    v_add_u32 v{tmp+4}, v{tmp+4}, v{tmp+5}
    s_lshl_b32 s22, s17, 10
    v_add_u32 v{vO}, s22, v{tmp+4}
    v_add_u32 v{vUo}, {UB+480}, v{vO}
    v_mov_b32 v{tmp}, 0
    v_mov_b32 v{tmp+1}, 0
    v_mov_b32 v{tmp+2}, 0
    v_mov_b32 v{tmp+3}, 0
    v_cmp_gt_u32 vcc, 30, v0
    s_and_saveexec_b64 s[24:25], vcc
    ds_write_b128 v{vU}, v[{tmp}:{tmp+3}] offset:{UB}
    s_mov_b64 exec, s[24:25]
    v_cmp_gt_u32 vcc, 2, v0
    s_and_saveexec_b64 s[24:25], vcc
    ds_write_b128 v{vU}, v[{tmp}:{tmp+3}] offset:{CP}
    ds_write_b128 v{vU}, v[{tmp}:{tmp+3}] offset:{CP+CP_PITCH}
    ds_write_b128 v{vU}, v[{tmp}:{tmp+3}] offset:{CP+2*CP_PITCH}
    ds_write_b128 v{vU}, v[{tmp}:{tmp+3}] offset:{CP+3*CP_PITCH}
    s_mov_b64 exec, s[24:25]
    s_waitcnt lgkmcnt(0)
    s_barrier
    """)
    tstamp()
    if dbg:
        a(f"""
        s_add_u32 s52, s4, 0x2000000
        s_addc_u32 s53, s5, 0
        s_mov_b32 s54, 0x1000000
        s_mov_b32 s55, 0x20000
        s_lshl_b32 s21, s2, 15
        ds_read_b128 v[{tmp}:{tmp+3}], v{vU} offset:{TAB}
        ds_read_b128 v[{tmp+4}:{tmp+7}], v{vU} offset:{TAB+4096}
        s_waitcnt lgkmcnt(0)
        buffer_store_dwordx4 v[{tmp}:{tmp+3}], v{vU}, s[52:55], s21 offen
        s_add_u32 s21, s21, 4096
        buffer_store_dwordx4 v[{tmp+4}:{tmp+7}], v{vU}, s[52:55], s21 offen
        s_nop 1
        """)
    for ch in range(3):
        if ch == 2:
            a(f"s_cmp_ge_u32 s2, 64")
            a(f"s_cbranch_scc1 {name}_fin")
        for e in range(11):
            a(f"ds_read_u16 v{EX + e}, v{GA+e} offset:{ch*TAB_PITCH}")
        a("s_waitcnt vmcnt(0)" if ch == 0 else "s_nop 0")
        a(f"ds_write_b128 v{vU}, v[{UR+4*ch}:{UR+4*ch+3}] offset:{UB+480}")
        a("s_waitcnt lgkmcnt(1)")
        for s in range(4):
            o = AFr + 4*s
            for k in range(4):
                e = 3 - s + 2*k
                a(f"v_lshl_or_b32 v{o+k}, v{EX+e+1}, 16, v{EX+e}")
            a(f"ds_write_b128 v{vCW}, v[{o}:{o+3}] offset:{s*CP_PITCH}")
        a("s_waitcnt lgkmcnt(0)")
        a("s_barrier")
        tstamp()
        if dbg and ch == 0:
            for k in range(5):
                a(f"""
                ds_read_b128 v[{tmp}:{tmp+3}], v{vU} offset:{CP+4096*k}
                s_add_u32 s21, s21, 4096
                s_waitcnt lgkmcnt(0)
                buffer_store_dwordx4 v[{tmp}:{tmp+3}], v{vU}, s[52:55], s21 offen
                s_nop 1
                """)
        for rp in range(2):
            for k in range(8):
                a(f"ds_read_b64_tr_b16 v[{AFr+4*k}:{AFr+4*k+1}], v{vA} offset:{512*k + 64*rp + 8}")
                a(f"ds_read_b64_tr_b16 v[{AFr+4*k+2}:{AFr+4*k+3}], v{vA} offset:{512*k + 64*rp}")
                a(f"ds_read_b128 v[{BFr+4*k}:{BFr+4*k+3}], v{vB} offset:{512*k + 64*(1-rp)}")
            for k in range(8):
                a(f"s_waitcnt lgkmcnt({min(15, 3*(7-k))})")
                prs = [(k, d) for d in range(k+1) if k + d <= 7] + [(x, k) for x in range(k) if x + k <= 7]
                for (x, d) in prs:
                    T = x + d
                    first = (rp == 0) and ((x, d) == first_pair(T))
                    c = "0" if first else f"v[{ACC+4*T}:{ACC+4*T+3}]"
                    a(f"v_mfma_f32_16x16x32_bf16 v[{ACC+4*T}:{ACC+4*T+3}], v[{AFr+4*x}:{AFr+4*x+3}], v[{BFr+4*d}:{BFr+4*d+3}], {c}")
            a("s_nop 3")
        a("s_nop 7")
        tstamp()
        for w in range(4):
            lab = a.label("rw")
            a(f"s_cmp_lg_u32 s17, {w}")
            a(f"s_cbranch_scc1 {lab}")
            for T in range(8):
                o = T >> 1
                if o == w: continue
                slot = (w - o - 1) & 3
                a(f"ds_write_b128 v{vRW}, v[{ACC+4*T}:{ACC+4*T+3}] offset:{T*3072 + slot*1024}")
            if w:
                for i in range(8): a(f"v_mov_b32 v{ACC+i}, v{ACC+8*w+i}")
            a(f"{lab}:")
        a("s_waitcnt lgkmcnt(0)")
        a("s_barrier")
        for k in range(6): a(f"ds_read_b128 v[{RR+4*k}:{RR+4*k+3}], v{vRR} offset:{k*1024}")
        a(f"ds_read_b64 v[{tmp}:{tmp+1}], v{vUo}")
        a(f"ds_read_b64 v[{tmp+2}:{tmp+3}], v{vUo} offset:512")
        a("s_waitcnt lgkmcnt(0)")
        for t in range(2):
            for k in range(3):
                for h in range(2):
                    r = ACC + 4*t + 2*h; s = RR + (3*t+k)*4 + 2*h
                    a(f"v_pk_add_f32 v[{r}:{r+1}], v[{r}:{r+1}], v[{s}:{s+1}]")
        for t in range(2):
            u = RR + 8*t
            a(f"""
            v_lshlrev_b32 v{u}, 16, v{tmp+2*t}
            v_and_b32 v{u+1}, s31, v{tmp+2*t}
            v_lshlrev_b32 v{u+2}, 16, v{tmp+2*t+1}
            v_and_b32 v{u+3}, s31, v{tmp+2*t+1}
            """)
            for i in range(4): a(f"v_mul_f32 v{u+i}, v{u+i}, v{DS+ch}")
            for i in range(4): a(f"v_cvt_pk_bf16_f32 v{u+i}, v{u+i}, v{ACC+4*t+i}")
            for i in range(4): a(f"v_dot2_f32_bf16 v{u+i}, v{u+i}, s30, 0")
            a("s_nop 2")
            a(f"v_cvt_pk_bf16_f32 v{u+4}, v{u}, v{u+1}")
            a(f"v_cvt_pk_bf16_f32 v{u+5}, v{u+2}, v{u+3}")
        a(f"s_lshl_b32 s21, s2, 12")
        if ch: a(f"s_add_u32 s21, s21, {ch*256*4096}")
        a(f"buffer_store_dwordx2 v[{RR+4}:{RR+5}], v{vO}, s[12:15], s21 offen")
        a(f"buffer_store_dwordx2 v[{RR+12}:{RR+13}], v{vO}, s[12:15], s21 offen offset:512")
        a("s_barrier")
        tstamp()
    a(f"{name}_fin:")
    if fine:
        a(f"""
        s_waitcnt vmcnt(0) lgkmcnt(0)
        s_add_u32 s36, s4, {stamp_off}
        s_addc_u32 s37, s5, 0
        s_mov_b32 s38, 0x10000
        s_mov_b32 s39, 0x20000
        s_lshl_b32 s26, s2, 8
        s_lshl_b32 s27, s17, 6
        s_add_u32 s26, s26, s27
        v_mov_b32 v8, s26
        """)
        for k in range(16): a(f"v_mov_b32 v{16+k}, s{64+2*k}")
        a(f"""
        v_cmp_eq_u32 vcc, 0, v1
        s_and_saveexec_b64 s[44:45], vcc
        buffer_store_dwordx4 v[16:19], v8, s[36:39], 0 offen
        buffer_store_dwordx4 v[20:23], v8, s[36:39], 0 offen offset:16
        buffer_store_dwordx4 v[24:27], v8, s[36:39], 0 offen offset:32
        buffer_store_dwordx4 v[28:31], v8, s[36:39], 0 offen offset:48
        """)
    a(f"{name}_end:")
    a("s_endpgm")
    a.end_kernel(name, 256)
    return LDS

def first_pair(T):
    for k in range(8):
        prs = [(k, d) for d in range(k+1) if k + d <= 7] + [(x, k) for x in range(k) if x + k <= 7]
        for p in prs:
            if p[0] + p[1] == T: return p

if __name__ == "__main__":
    a = Asm()
    gen_prep(a, "prep_kernel")
    lds = gen_ssm(a, "ssm_kernel", dbg=len(sys.argv) > 2)
    a.launch("prep_kernel", (256,1,1), (64,1,1), 8192)
    a.launch("ssm_kernel", (256,1,1), (256,1,1), lds)
    open(sys.argv[1], "w").write(a.text())
```

```python
import sys
from asmlib import Asm
from gen_g1 import gen_gemm1
from gen_gemm2 import gen_gemm2
from gen_ssm import gen_prep, gen_ssm
a = Asm()
gen_prep(a, "prep_kernel")
l1 = gen_gemm1(a, "g1_kernel", stamp=False)
l2 = gen_ssm(a, "ssm_kernel", fine=False)
nv, l3 = gen_gemm2(a, "g2_kernel", stamp=False, combine=True)
a.launch("prep_kernel", (256,1,1), (64,1,1), 8192)
a.launch("g1_kernel", (256,1,1), (256,1,1), l1)
a.launch("ssm_kernel", (256,1,1), (256,1,1), l2)
a.launch("g2_kernel", (234,1,1), (256,1,1), max(l3, 81920))
open(sys.argv[1], "w").write(a.text())
```

```python
import sys
from asmlib import Asm
from gen_g1 import Stream

H_OFF  = 0x100000
XT_OFF = 0x1400000
AT_OFF = 0x1700000
G_OFF  = 0x1A00000
P_OFF  = 0x1B00000
LOG2E = 1.4426950408889634

def hreg(ks, rt, HV):
    idx = ks*2 + rt
    if idx < 64: return f"a[{idx*4}:{idx*4+3}]"
    r = HV + (idx-64)*4
    return f"v[{r}:{r+3}]"

def gen_g2p(a, name, KS=6, NS=6, fine=False, stamp=False, hsc="sc1", psc="sc1", PACE=2, NBUF=3, opt=""):
    S = Stream(a)
    ACC = 0
    HV = 64
    AF = 96
    V = AF + 16*NBUF
    vT = V
    vT2 = V + 12
    vW, vW2, vH, vP = V+15, V+16, V+17, V+18
    vt = V + 20
    NV = vt + 8
    WINS = [0, 61440, 122880]
    SLOT = KS*4096
    nstamp = [0]
    def tstamp():
        if fine and nstamp[0] < 16:
            k = nstamp[0]; S(f"s_memtime s[{64+2*k}:{65+2*k}]"); nstamp[0] += 1
    a.begin_kernel(name)
    a(f"""
    s_cmp_ge_u32 s2, 256
    s_cbranch_scc1 {name}_end
    s_load_dwordx2 s[4:5], s[0:1], 128
    s_load_dwordx2 s[6:7], s[0:1], 96
    s_memrealtime s[40:41]
    """)
    tstamp()
    a(f"""
    s_and_b32 s12, s2, 7             ; G
    s_lshr_b32 s13, s2, 3
    s_and_b32 s14, s13, 3            ; i
    s_lshr_b32 s15, s13, 2           ; mt
    v_lshrrev_b32 v{vt}, 6, v0
    v_and_b32 v{vt+1}, 63, v0
    s_lshr_b32 s16, s12, 1           ; gamma
    v_readfirstlane_b32 s17, v{vt}
    s_and_b32 s18, s12, 1            ; rh
    v_lshrrev_b32 v{vt+2}, 3, v{vt+1}
    v_mul_u32_u24 v{vt+2}, 1152, v{vt+2}
    v_lshrrev_b32 v{vt+3}, 4, v{vt+1}
    v_lshlrev_b32 v{vt+3}, 1, v{vt+3}
    v_and_b32 v{vt+4}, 7, v{vt+1}
    v_xor_b32 v{vt+3}, v{vt+3}, v{vt+4}
    v_lshlrev_b32 v{vt+3}, 4, v{vt+3}
    v_add_u32 v{vW}, v{vt+2}, v{vt+3}
    s_mul_i32 s19, s17, {8*1152}
    v_add_u32 v{vW}, s19, v{vW}
    v_lshrrev_b32 v{vt+2}, 1, v{vt+1}
    v_mul_u32_u24 v{vt+2}, 1152, v{vt+2}
    v_and_b32 v{vt+3}, 1, v{vt+1}
    v_lshlrev_b32 v{vt+3}, 4, v{vt+3}
    v_add_u32 v{vW2}, v{vt+2}, v{vt+3}
    s_mul_i32 s19, s17, {32*1152}
    v_add_u32 v{vW2}, s19, v{vW2}
    v_lshlrev_b32 v{vH}, 4, v{vt+1}
    s_mul_i32 s48, s16, {1152*1152}
    s_lshl_b32 s19, s14, 5
    s_add_u32 s50, s48, s19
    s_add_u32 s50, s50, 1024
    s_lshl_b32 s19, s14, 8
    s_add_u32 s48, s48, s19
    s_lshl_b32 s51, s17, 10          ; w*1024
    s_mul_i32 s53, s16, {36*131072}
    s_lshl_b32 s19, s15, 14
    s_add_u32 s53, s53, s19
    s_lshl_b32 s19, s18, 13
    s_add_u32 s53, s53, s19
    s_lshl_b32 s19, s17, 11
    s_add_u32 s53, s53, s19
    s_lshl_b32 s54, s16, 4
    s_lshl_b32 s19, s15, 1
    s_add_u32 s54, s54, s19
    s_add_u32 s54, s54, s18
    s_lshl_b32 s54, s54, 2
    s_add_u32 s54, s54, s14
    s_lshl_b32 s54, s54, 2
    s_add_u32 s54, s54, s17
    s_mul_i32 s54, s54, 9216
    s_waitcnt lgkmcnt(0)
    s_mov_b32 s20, s6
    s_mov_b32 s21, s7
    s_mov_b32 s22, {4608*1152}
    s_mov_b32 s23, 0x20000
    s_add_u32 s8, s4, {H_OFF}
    s_addc_u32 s9, s5, 0
    s_mov_b32 s10, {144*131072}
    s_mov_b32 s11, 0x20000
    s_add_u32 s24, s4, {P_OFF}
    s_addc_u32 s25, s5, 0
    s_mov_b32 s26, {4*64*4*9216}
    s_mov_b32 s27, 0x20000
    """)
    rest = f"""
    v_lshrrev_b32 v{vt+2}, 2, v{vt+1}
    v_lshrrev_b32 v{vt+3}, 1, v{vt+2}
    v_and_b32 v{vt+3}, 3, v{vt+3}
    v_lshlrev_b32 v{vt+3}, 5, v{vt+3}
    v_lshlrev_b32 v{vt+2}, 7, v{vt+2}
    v_and_b32 v{vt+4}, 3, v{vt+1}
    v_lshlrev_b32 v{vt+4}, 3, v{vt+4}
    v_add_u32 v{vt+2}, v{vt+2}, v{vt+4}
    """
    for j in range(4):
        rest += f"""
        v_xor_b32 v{vt+4}, {32*j}, v{vt+3}
        v_add_u32 v{vT+j}, v{vt+2}, v{vt+4}
        v_add_u32 v{vT+4+j}, {WINS[1]}, v{vT+j}
        v_add_u32 v{vT+8+j}, {WINS[2]}, v{vT+j}
        """
    rest += f"""
    v_lshlrev_b32 v{vT2}, 3, v{vt+1}
    v_add_u32 v{vT2+1}, {WINS[1]}, v{vT2}
    v_add_u32 v{vT2+2}, {WINS[2]}, v{vT2}
    v_add_u32 v{vP}, 4096, v{vH}
    """
    stages = []
    for p in range(2):
        for k in range(0, 36, KS): stages.append((p, list(range(k, min(36, k+KS)))))
    KS2 = KS*4
    for k in range(0, 36, KS2): stages.append((2, list(range(k, min(36, k+KS2)))))
    NST = len(stages)
    def sbase(s): return (s % NS)*SLOT
    def dma_ops(s):
        p, kl = stages[s]
        ops = []
        if p < 2:
            for n, ks in enumerate(kl):
                ops.append(lambda o=sbase(s)+n*4096: S(f"s_add_u32 m0, s51, {o}"))
                ops.append(lambda ks=ks: S(f"s_add_u32 s52, s48, {ks*32*1152 + p*128}"))
                ops.append(lambda: S.vmem(f"buffer_load_dwordx4 v{vW}, s[20:23], s52 offen lds", ("W", s)))
        else:
            for n in range(0, len(kl), 4):
                ops.append(lambda o=sbase(s)+n*1024: S(f"s_add_u32 m0, s51, {o}"))
                ops.append(lambda ks=kl[n]: S(f"s_add_u32 s52, s50, {ks*32*1152}"))
                ops.append(lambda: S.vmem(f"buffer_load_dwordx4 v{vW2}, s[20:23], s52 offen lds", ("W", s)))
        return ops
    def h_ops(ks):
        return [lambda: S(f"s_add_u32 s55, s53, {ks*131072}"),
                lambda: S.vmem(f"buffer_load_dwordx4 {hreg(ks,0,HV)}, v{vH}, s[8:11], s55 offen {hsc}", ("H", ks)),
                lambda: S.vmem(f"buffer_load_dwordx4 {hreg(ks,1,HV)}, v{vH}, s[8:11], s55 offen offset:1024 {hsc}", ("H", ks))]
    blocks = []; first = {}; last = {}
    for s, (p, kl) in enumerate(stages):
        first[s] = len(blocks)
        if p < 2:
            for n, ks in enumerate(kl): blocks.append((p, [ks], s, n))
        else:
            for n in range(0, len(kl), 4): blocks.append((p, kl[n:n+4], s, n))
        last[s] = len(blocks) - 1
    NB = len(blocks)
    def tr(r, basereg, nlo, off, bi):
        w = 2 if off >= WINS[2] else (1 if off >= WINS[1] else 0)
        S.lds(f"ds_read_b64_tr_b16 v[{r}:{r+1}], v{basereg+nlo*w} offset:{off-WINS[w]}", ("A", r & ~3, bi))
    def tr_ops(bi):
        p, kl, s, n = blocks[bi]
        buf = AF + (bi % NBUF)*16
        ops = []
        for j in range(4):
            r = buf + 4*j
            if p < 2:
                o = sbase(s) + n*4096
                ops.append(lambda r=r, j=j, o=o: tr(r, vT+j, 4, o, bi))
                ops.append(lambda r=r, j=j, o=o: tr(r+2, vT+j, 4, o+2048, bi))
            else:
                o = sbase(s) + (n+j)*1024
                ops.append(lambda r=r, o=o: tr(r, vT2, 1, o, bi))
                ops.append(lambda r=r, o=o: tr(r+2, vT2, 1, o+512, bi))
        return ops
    def acc(p, j, rt): return ACC + (p % 2)*32 + (j*2+rt)*4
    def mfma_list(bi):
        p, kl, s, n = blocks[bi]
        buf = AF + (bi % NBUF)*16
        L = []
        for j in range(4):
            for rt in range(2):
                ks = kl[0] if p < 2 else kl[j]
                jj = j if p < 2 else (j & 1)
                d = acc(p, jj, rt); A = buf + 4*j
                c = "0" if (ks == 0 or (p == 2 and ks == 1)) else f"v[{d}:{d+3}]"
                L.append((f"v_mfma_f32_16x16x32_bf16 v[{d}:{d+3}], v[{A}:{A+3}], {hreg(ks,rt,HV)}, {c}", ("A", A, bi), ("H", ks) if p == 0 else None))
        return L
    def epi_ops(p):
        ops = []
        if p < 2:
            for pp in range(2):
                for rt in range(2):
                    x, y = acc(p, 2*pp, rt), acc(p, 2*pp+1, rt)
                    ops.append(lambda x=x: S(f"v_cvt_pk_bf16_f32 v{x}, v{x}, v{x+1}"))
                    ops.append(lambda x=x: S(f"v_cvt_pk_bf16_f32 v{x+1}, v{x+2}, v{x+3}"))
                    ops.append(lambda x=x, y=y: S(f"v_cvt_pk_bf16_f32 v{x+2}, v{y}, v{y+1}"))
                    ops.append(lambda x=x, y=y: S(f"v_cvt_pk_bf16_f32 v{x+3}, v{y+2}, v{y+3}"))
                    f = p*4 + pp*2 + rt
                    ops.append(lambda x=x, f=f: S.vmem(f"buffer_store_dwordx4 v[{x}:{x+3}], v{vH if f < 4 else vP}, s[24:27], s54 offen offset:{(f%4)*1024} {psc}", ("P", p)))
        else:
            x, y = acc(2,0,0), acc(2,0,1); x2, y2 = acc(2,1,0), acc(2,1,1)
            for r in range(4): ops.append(lambda r=r: S(f"v_add_f32 v{x+r}, v{x+r}, v{x2+r}"))
            for r in range(4): ops.append(lambda r=r: S(f"v_add_f32 v{y+r}, v{y+r}, v{y2+r}"))
            ops.append(lambda: S(f"v_cvt_pk_bf16_f32 v{x}, v{x}, v{x+1}"))
            ops.append(lambda: S(f"v_cvt_pk_bf16_f32 v{x+1}, v{x+2}, v{x+3}"))
            ops.append(lambda: S(f"v_cvt_pk_bf16_f32 v{x+2}, v{y}, v{y+1}"))
            ops.append(lambda: S(f"v_cvt_pk_bf16_f32 v{x+3}, v{y+2}, v{y+3}"))
            ops.append(lambda: S(f"s_add_u32 s55, s54, 8192"))
            ops.append(lambda: S.vmem(f"buffer_store_dwordx4 v[{x}:{x+3}], v{vH}, s[24:27], s55 offen {psc}", ("P", p)))
        return ops
    def run(ops):
        for f in ops: f()
    hq = []
    nh = 0
    run(dma_ops(0))
    for ks in range(KS): run(h_ops(ks))
    nh = KS
    run(dma_ops(1))
    S(rest)
    HPRE = 18 if "h" not in opt else int(opt.split("h")[1].split(",")[0])
    next_dma = 2
    while nh < HPRE or next_dma < NS - 1:
        for k in range(KS):
            if nh < HPRE: run(h_ops(nh)); nh += 1
        if next_dma < NS - 1: run(dma_ops(next_dma)); next_dma += 1
    tstamp()
    S.wait_vm({("W", 0)})
    S("s_barrier")
    tstamp()
    for b in range(NBUF-1): run(tr_ops(b))
    vq = []; epi = []
    gslot = [0, 0]
    for bi in range(NB):
        p, kl, s, n = blocks[bi]
        M = mfma_list(bi)
        nb = bi + NBUF - 1
        t = tr_ops(nb) if nb < NB else []
        if nb < NB and nb == first[blocks[nb][2]]:
            s1 = blocks[nb][2]
            S.wait_vm({("W", s1)})
            S("s_barrier")
            if next_dma < NST and next_dma - NS <= s1 - 2:
                vq.extend(dma_ops(next_dma)); next_dma += 1
            if fine and s1 in (1,2,3,4,5,6,8,10,12,13): tstamp()
        if p == 0 and nh < 36 and nh < kl[0] + HPRE + 1:
            vq.extend(h_ops(nh)); nh += 1
        if bi > 0 and blocks[bi-1][0] != p:
            epi = [(len(a.lines) + 12, f) for f in epi_ops(p-1)]
        for mi, (m, ta, th) in enumerate(M):
            n0 = len(a.lines)
            if th: S.wait_vm({th})
            S.wait_ds({ta})
            S(m)
            if mi < len(t): t[mi]()
            while epi and epi[0][0] <= len(a.lines) and len(a.lines) - n0 < 3: epi.pop(0)[1]()
            gslot[0] += 1
            while vq and len(a.lines) - n0 < 3 and gslot[0] >= gslot[1]:
                nv = len(S.vm)
                vq.pop(0)()
                if len(S.vm) > nv: gslot[1] = gslot[0] + PACE
    assert not vq and not epi, (len(vq), len(epi))
    S("s_nop 7")
    tstamp()
    run(epi_ops(2))
    if fine:
        S("s_waitcnt vmcnt(0)")
        tstamp()
        a(f"""
        s_waitcnt lgkmcnt(0)
        s_mov_b32 s36, s4
        s_mov_b32 s37, s5
        s_mov_b32 s38, 0x10000
        s_mov_b32 s39, 0x20000
        s_lshl_b32 s26, s2, 8
        s_lshl_b32 s27, s17, 6
        s_add_u32 s26, s26, s27
        v_mov_b32 v8, s26
        """)
        for k in range(16): a(f"v_mov_b32 v{16+k}, s{64+2*k}")
        a(f"""
        v_cmp_eq_u32 vcc, 0, v{vt+1}
        s_and_saveexec_b64 s[44:45], vcc
        buffer_store_dwordx4 v[16:19], v8, s[36:39], 0 offen
        buffer_store_dwordx4 v[20:23], v8, s[36:39], 0 offen offset:16
        buffer_store_dwordx4 v[24:27], v8, s[36:39], 0 offen offset:32
        buffer_store_dwordx4 v[28:31], v8, s[36:39], 0 offen offset:48
        """)
    a(f"{name}_end:")
    a("s_endpgm")
    a.end_kernel(name, 512, accum=256)
    return NS*SLOT

def gen_red(a, name):
    a.begin_kernel(name)
    a(f"""
    s_cmp_ge_u32 s2, 256
    s_cbranch_scc1 {name}_end
    s_load_dwordx2 s[4:5], s[0:1], 128
    s_load_dwordx2 s[6:7], s[0:1], 112
    v_lshrrev_b32 v2, 6, v0
    v_and_b32 v1, 63, v0
    v_lshlrev_b32 v3, 4, v1
    v_readfirstlane_b32 s17, v2      ; frag f
    s_mul_i32 s12, s2, 9
    s_add_u32 s12, s12, s17
    s_lshl_b32 s12, s12, 10
    s_and_b32 s13, s2, 3             ; w
    s_bfe_u32 s14, s2, 0x20002       ; i
    s_lshr_b32 s15, s2, 4            ; mh
    s_lshl_b32 s15, s15, 7
    s_lshl_b32 s13, s13, 5
    s_add_u32 s15, s15, s13
    s_and_b32 s18, s17, 1
    s_lshl_b32 s18, s18, 4
    s_add_u32 s18, s18, s15          ; rA
    s_lshr_b32 s19, s17, 1
    s_lshl_b32 s19, s19, 5
    s_lshl_b32 s20, s14, 7
    s_add_u32 s19, s19, s20          ; cA
    s_lshl_b32 s20, s14, 4
    s_add_u32 s20, s20, 512
    s_cmp_eq_u32 s17, 8
    s_cselect_b32 s19, s20, s19
    s_cselect_b32 s21, 16, 0         ; dr
    s_cselect_b32 s22, 0, 16         ; dc
    s_waitcnt lgkmcnt(0)
    s_add_u32 s8, s4, {P_OFF}
    s_addc_u32 s9, s5, 0
    s_mov_b32 s10, {4*64*4*9216}
    s_mov_b32 s11, 0x20000
    buffer_load_dwordx4 v[16:19], v3, s[8:11], s12 offen
    s_add_u32 s12, s12, {256*9216}
    buffer_load_dwordx4 v[20:23], v3, s[8:11], s12 offen
    s_add_u32 s12, s12, {256*9216}
    buffer_load_dwordx4 v[24:27], v3, s[8:11], s12 offen
    s_add_u32 s12, s12, {256*9216}
    buffer_load_dwordx4 v[28:31], v3, s[8:11], s12 offen
    s_add_u32 s24, s4, {AT_OFF}
    s_addc_u32 s25, s5, 0
    s_mov_b32 s26, {576*4096}
    s_mov_b32 s27, 0x20000
    v_bfe_u32 v4, v1, 1, 4
    v_lshlrev_b32 v4, 12, v4
    v_and_b32 v5, 1, v1
    v_lshl_add_u32 v4, v5, 4, v4
    v_lshrrev_b32 v5, 5, v1
    s_lshl_b32 s23, s22, 12
    s_lshl_b32 s28, s21, 1
    s_add_u32 s23, s23, s28
    v_mul_lo_u32 v5, v5, s23
    v_add_u32 v4, v4, v5
    s_lshl_b32 s28, s19, 12
    s_lshl_b32 s29, s18, 1
    s_add_u32 s28, s28, s29
    s_lshl_b32 m0, s17, 10
    s_add_u32 s32, s4, {G_OFF}
    buffer_load_dwordx4 v4, s[24:27], s28 offen lds
    s_addc_u32 s33, s5, 0
    s_mov_b32 s34, 8192
    s_mov_b32 s35, 0x20000
    v_and_b32 v6, 15, v1
    v_lshlrev_b32 v7, 2, v6
    s_lshl_b32 s28, s18, 2
    buffer_load_dword v8, v7, s[32:35], s28 offen
    s_lshl_b32 s29, s21, 2
    s_add_u32 s28, s28, s29
    buffer_load_dword v9, v7, s[32:35], s28 offen
    s_mov_b32 s36, s6
    s_mov_b32 s37, s7
    s_mov_b32 s38, {2048*1152}
    s_mov_b32 s39, 0x20000
    v_mul_u32_u24 v10, 1152, v6
    v_bfe_u32 v11, v1, 4, 1
    s_mul_i32 s28, s21, 1152
    s_lshl_b32 s29, s22, 1
    s_add_u32 s28, s28, s29
    v_mul_lo_u32 v11, v11, s28
    v_add_u32 v10, v10, v11
    v_lshrrev_b32 v11, 5, v1
    v_lshl_add_u32 v10, v11, 4, v10
    s_mul_i32 s28, s18, 1152
    s_lshl_b32 s29, s19, 1
    s_add_u32 s28, s28, s29
    v_lshlrev_b32 v12, 3, v1
    s_lshl_b32 s29, s17, 10
    v_add_u32 v12, s29, v12
    s_mov_b32 s30, 0x3f803f80
    s_mov_b32 s31, 0xffff0000
    s_waitcnt vmcnt(5)
    """)
    for k in range(4):
        a(f"v_lshlrev_b32 v{32+2*k}, 16, v{16+k}")
        a(f"v_and_b32 v{33+2*k}, s31, v{16+k}")
        a(f"v_lshlrev_b32 v{40+2*k}, 16, v{20+k}")
        a(f"v_and_b32 v{41+2*k}, s31, v{20+k}")
        a(f"v_pk_add_f32 v[{32+2*k}:{33+2*k}], v[{32+2*k}:{33+2*k}], v[{40+2*k}:{41+2*k}]")
    a("s_waitcnt vmcnt(3)")
    for k in range(4):
        a(f"v_lshlrev_b32 v{48+2*k}, 16, v{24+k}")
        a(f"v_and_b32 v{49+2*k}, s31, v{24+k}")
        a(f"v_lshlrev_b32 v{40+2*k}, 16, v{28+k}")
        a(f"v_and_b32 v{41+2*k}, s31, v{28+k}")
        a(f"v_pk_add_f32 v[{48+2*k}:{49+2*k}], v[{48+2*k}:{49+2*k}], v[{40+2*k}:{41+2*k}]")
    a("s_waitcnt vmcnt(2)")
    a("ds_read_b64_tr_b16 v[16:17], v12")
    a("ds_read_b64_tr_b16 v[18:19], v12 offset:512")
    for k in range(4):
        a(f"v_pk_add_f32 v[{32+2*k}:{33+2*k}], v[{32+2*k}:{33+2*k}], v[{48+2*k}:{49+2*k}]")
    for k in range(4):
        a(f"v_cvt_pk_bf16_f32 v{20+k}, v{32+2*k}, v{33+2*k}")
    a(f"""
    s_waitcnt vmcnt(0)
    v_sub_f32 v13, 1.0, v8
    v_sub_f32 v14, 1.0, v9
    v_cvt_pk_bf16_f32 v13, v13, v14
    v_and_b32 v14, s31, v13
    v_lshlrev_b32 v13, 16, v13
    """)
    for k in range(4):
        g1 = 13 if k < 2 else 14
        a(f"v_lshlrev_b32 v{32+2*k}, 16, v{20+k}")
        a(f"v_and_b32 v{33+2*k}, s31, v{20+k}")
        a(f"v_mul_f32 v{32+2*k}, v{32+2*k}, v{g1}")
        a(f"v_mul_f32 v{33+2*k}, v{33+2*k}, v{g1}")
    a("s_waitcnt lgkmcnt(0)")
    for k in range(4):
        g = 8 if k < 2 else 9
        a(f"v_lshlrev_b32 v{40+2*k}, 16, v{16+k}")
        a(f"v_and_b32 v{41+2*k}, s31, v{16+k}")
        a(f"v_mul_f32 v{40+2*k}, v{40+2*k}, v{g}")
        a(f"v_mul_f32 v{41+2*k}, v{41+2*k}, v{g}")
    for k in range(8): a(f"v_cvt_pk_bf16_f32 v{32+k}, v{32+k}, v{40+k}")
    for k in range(8): a(f"v_dot2_f32_bf16 v{32+k}, v{32+k}, s30, 0")
    a("s_nop 1")
    for k in range(4): a(f"v_cvt_pk_bf16_f32 v{20+k}, v{32+2*k}, v{33+2*k}")
    a(f"""
    s_nop 1
    v_permlane16_swap_b32 v20, v22
    v_permlane16_swap_b32 v21, v23
    s_nop 1
    buffer_store_dwordx4 v[20:23], v10, s[36:39], s28 offen
    """)
    a(f"{name}_end:")
    a("s_endpgm")
    a.end_kernel(name, 64)
    return 9216

if __name__ == "__main__":
    import argparse
    ap = argparse.ArgumentParser()
    ap.add_argument("out"); ap.add_argument("--ks", type=int, default=6); ap.add_argument("--ns", type=int, default=6)
    ap.add_argument("--fine", action="store_true"); ap.add_argument("--opt", default=""); ap.add_argument("--pace", type=int, default=2)
    ap.add_argument("--nbuf", type=int, default=3); ap.add_argument("--only", action="store_true")
    x = ap.parse_args()
    a = Asm()
    if not x.only:
        from gen_g1 import gen_gemm1
        from gen_ssm import gen_prep, gen_ssm
        gen_prep(a, "prep_kernel")
        l1 = gen_gemm1(a, "g1_kernel", stamp=False)
        l2 = gen_ssm(a, "ssm_kernel", fine=False)
        a.launch("prep_kernel", (256,1,1), (64,1,1), 8192)
        a.launch("g1_kernel", (256,1,1), (256,1,1), l1)
        a.launch("ssm_kernel", (256,1,1), (256,1,1), l2)
    l3 = gen_g2p(a, "g2p_kernel", KS=x.ks, NS=x.ns, fine=x.fine, opt=x.opt, PACE=x.pace, NBUF=x.nbuf)
    a.launch("g2p_kernel", (256,1,1), (256,1,1), l3)
    if not x.only:
        l4 = gen_red(a, "red_kernel")
        a.launch("red_kernel", (256,1,1), (576,1,1), l4)
    open(x.out, "w").write(a.text())
```

```python
import sys
from asmlib import Asm

class Stream:
    def __init__(self, a):
        self.a = a
        self.vm = []; self.vm_done = -1
        self.ds = []; self.ds_done = -1
    def __call__(self, s): self.a(s)
    def vmem(self, s, tag):
        self.a(s); self.vm.append(tag)
    def lds(self, s, tag=None):
        self.a(s); self.ds.append(tag)
    def wait_vm(self, tags):
        last = -1
        for i in range(len(self.vm)-1, self.vm_done, -1):
            if self.vm[i] in tags: last = i; break
        if last < 0: return 0
        n = len(self.vm) - 1 - last
        self.vm_done = last
        if n < 63: self.a(f"s_waitcnt vmcnt({n})"); return 1
        return 0
    def wait_ds(self, tags):
        last = -1
        for i in range(len(self.ds)-1, self.ds_done, -1):
            if self.ds[i] in tags: last = i; break
        if last < 0: return 0
        n = min(15, len(self.ds) - 1 - last)
        self.ds_done = len(self.ds) - 1 - n
        self.a(f"s_waitcnt lgkmcnt({n})"); return 1
    def wait_ds_all(self):
        if self.ds_done < len(self.ds) - 1:
            self.a("s_waitcnt lgkmcnt(0)"); self.ds_done = len(self.ds) - 1

XST = 65536
G1_LDS = 163840
WINS = [0, 61440, 122880]

def gen_gemm1(a, name, H_OFF=0x100000, stamp=True, stflags='', do_store=True, stamp_off=0, fine=False, opt=''):
    S = Stream(a)
    ROT = "rot" in opt
    XT0 = 84
    WNT = " nt" if "wnt" in opt else ""
    XNT = " nt" if "xnt" in opt else ""
    DNT = " nt" if "dnt" in opt else ""
    DXNT = " nt" if "dxnt" in opt else ""
    PPF = int(opt.split("ppf")[1].split(",")[0]) if "ppf" in opt else None
    ACC = 0
    XV = 128
    AF = 160
    V = 224
    vT = V
    vT2 = V+12
    vW = V+18
    vW2 = V+19
    vX = V+20
    vXr = V+24
    vS01, vS23 = V+26, V+27
    vt = V+27
    def acc(mat, j, rt): return ACC + ((j*2+mat)*4+rt)*4
    def xreg(ks, rt):
        idx = ks*4+rt
        if idx < 64: return f"a[{idx*4}:{idx*4+3}]"
        r = XV + (idx-64)*4
        return f"v[{r}:{r+3}]"
    a.begin_kernel(name)
    a(f"""
    s_cmp_ge_u32 s2, 256
    s_cbranch_scc1 {name}_end
    s_load_dwordx2 s[4:5], s[0:1], 128
    s_load_dwordx2 s[6:7], s[0:1], 0
    s_load_dwordx4 s[28:31], s[0:1], 80
    s_memrealtime s[40:41]
    s_and_b32 s12, s2, 7             ; G (xcd)
    s_lshr_b32 s13, s2, 3
    s_and_b32 s14, s13, 3            ; i
    s_lshr_b32 s15, s13, 2           ; mt
    v_lshrrev_b32 v{vt}, 6, v0
    v_and_b32 v{vt+1}, 63, v0        ; lane
    s_nop 0
    v_readfirstlane_b32 s17, v{vt}   ; wave
    s_mul_i32 s16, s12, 9
    s_lshl_b32 s18, s14, 1
    s_add_u32 s18, s18, s16          ; LC0 = 9G+2i
    s_add_u32 s19, s16, 8            ; LC2 = 9G+8
    s_and_b32 s33, s14, 1            ; half
    s_lshr_b32 s34, s14, 1           ; swap (0/1)
    v_lshrrev_b32 v{vt+2}, 3, v{vt+1}
    v_mul_u32_u24 v{vt+2}, 9216, v{vt+2}
    v_bfe_u32 v{vt+3}, v{vt+1}, 4, 1
    v_lshlrev_b32 v{vt+3}, 1, v{vt+3}
    s_and_b32 s43, s17, 1
    s_lshl_b32 s43, s43, 2
    v_or_b32 v{vt+3}, s43, v{vt+3}
    v_and_b32 v{vt+4}, 7, v{vt+1}
    v_xor_b32 v{vt+3}, v{vt+3}, v{vt+4}
    v_lshlrev_b32 v{vt+3}, 4, v{vt+3}
    v_add_u32 v{vW}, v{vt+2}, v{vt+3}
    s_mul_i32 s43, s17, {8*9216}
    v_add_u32 v{vW}, s43, v{vW}
    v_lshrrev_b32 v{vt+2}, 3, v{vt+1}
    v_mul_u32_u24 v{vt+2}, 1152, v{vt+2}
    v_lshrrev_b32 v{vt+3}, 4, v{vt+1}
    v_xor_b32 v{vt+3}, v{vt+3}, v{vt+4}
    v_lshlrev_b32 v{vt+3}, 4, v{vt+3}
    v_add_u32 v{vX}, v{vt+2}, v{vt+3}
    v_xor_b32 v{vt+3}, 64, v{vt+3}
    v_add_u32 v{vX+1}, v{vt+2}, v{vt+3}
    v_add_u32 v{vX+1}, {8192}, v{vX+1}
    v_add_u32 v{vX+2}, {2*8192}, v{vX}
    v_add_u32 v{vX+3}, {2*8192}, v{vX+1}
    s_lshl_b32 s48, s18, 7
    s_add_u32 s49, s48, 128
    s_lshl_b32 s50, s19, 7
    s_lshl_b32 s43, s33, 6
    s_add_u32 s50, s50, s43
    s_lshl_b32 s51, s17, 11
    s_lshl_b32 s55, s17, 10          ; w*1024  (pass 2)
    s_lshl_b32 s42, s15, 8
    s_lshl_b32 s43, s17, 6
    s_add_u32 s42, s42, s43
    s_lshl_b32 s43, s34, 5
    s_add_u32 s80, s42, s43
    s_mul_i32 s80, s80, 1152
    s_xor_b32 s43, s43, 32
    s_add_u32 s81, s42, s43
    s_mul_i32 s81, s81, 1152
    s_lshl_b32 s82, s17, 13
    s_add_u32 s82, s82, {XST}
    ROTSETUP
    s_waitcnt lgkmcnt(0)
    s_mov_b32 s20, s28
    s_mov_b32 s21, s29
    s_mov_b32 s22, {576*9216}
    s_mov_b32 s23, 0x20000
    s_sub_u32 s24, s30, 1024
    s_subb_u32 s25, s31, 0
    s_mov_b32 s26, {576*9216+1024}
    s_mov_b32 s27, 0x20000
    ; SRD x: s[8:11]
    s_mov_b32 s8, s6
    s_mov_b32 s9, s7
    s_mov_b32 s10, {2048*1152}
    s_mov_b32 s11, 0x20000
    """)
    rs = []
    if ROT:
        rm = int(opt.split("rot")[1].split(",")[0] or 1)
        rs.append(f"s_mul_i32 s{XT0}, s12, {128*rm}")
        rs.append(f"s_cmp_ge_u32 s{XT0}, 1152"); rs.append(f"s_cselect_b32 s43, 1152, 0"); rs.append(f"s_sub_u32 s{XT0}, s{XT0}, s43")
        for g in range(1, 9):
            rs += [f"s_add_u32 s{XT0+g}, s{XT0+g-1}, 128", f"s_cmp_eq_u32 s{XT0+g}, 1152", f"s_cselect_b32 s{XT0+g}, 0, s{XT0+g}"]
        rs.append(f"v_add_u32 v{vW}, s48, v{vW}")
    i = [k for k, l in enumerate(a.lines) if "ROTSETUP" in l][0]
    a.lines[i:i+1] = ["    " + l for l in rs]
    rest_setup = f"""
    ; SRD H s[36:39]
    s_add_u32 s36, s4, {H_OFF}
    s_addc_u32 s37, s5, 0
    s_mov_b32 s38, {144*131072}
    s_mov_b32 s39, 0x20000
    v_lshrrev_b32 v{vt+2}, 2, v{vt+1}
    v_mul_u32_u24 v{vt+2}, 9216, v{vt+2}
    v_lshrrev_b32 v{vt+3}, 5, v{vt+1}
    v_lshlrev_b32 v{vt+3}, 1, v{vt+3}
    v_and_b32 v{vt+4}, 3, v{vt+1}
    v_xor_b32 v{vt+3}, v{vt+3}, v{vt+4}
    v_lshlrev_b32 v{vt+3}, 4, v{vt+3}
    v_add_u32 v{vW2}, v{vt+2}, v{vt+3}
    s_and_b32 s43, s17, 1
    s_mul_i32 s43, s43, {16*9216}
    v_add_u32 v{vW2}, s43, v{vW2}
    {"v_add_u32 v%d, s50, v%d" % (vW2, vW2) if ROT else ""}
    s_cmp_lt_u32 s17, 2
    s_cselect_b32 s56, s28, s30
    s_cselect_b32 s57, s29, s31
    s_mov_b32 s58, {576*9216}
    s_mov_b32 s59, 0x20000
    v_lshrrev_b32 v{vt+2}, 4, v{vt+1}
    v_lshlrev_b32 v{vt+2}, 11, v{vt+2}
    v_bfe_u32 v{vt+3}, v{vt+1}, 2, 2
    v_lshlrev_b32 v{vt+3}, 7, v{vt+3}
    v_add_u32 v{vt+2}, v{vt+2}, v{vt+3}
    v_and_b32 v{vt+3}, 3, v{vt+1}
    v_lshlrev_b32 v{vt+3}, 3, v{vt+3}
    v_add_u32 v{vt+2}, v{vt+2}, v{vt+3}
    v_bfe_u32 v{vt+3}, v{vt+1}, 3, 2
    v_lshlrev_b32 v{vt+3}, 5, v{vt+3}
    """
    for j in range(4):
        rest_setup += f"""
        v_xor_b32 v{vt+4}, {32*j}, v{vt+3}
        v_add_u32 v{vT+j}, v{vt+2}, v{vt+4}
        v_add_u32 v{vT+4+j}, {WINS[1]}, v{vT+j}
        v_add_u32 v{vT+8+j}, {WINS[2]}, v{vT+j}
        """
    rest_setup += f"""
    v_and_b32 v{vt+2}, 15, v{vt+1}
    v_lshrrev_b32 v{vt+3}, 1, v{vt+2}
    v_lshlrev_b32 v{vt+2}, 7, v{vt+2}
    v_lshrrev_b32 v{vt+4}, 4, v{vt+1}
    v_xor_b32 v{vt+3}, v{vt+3}, v{vt+4}
    v_lshlrev_b32 v{vt+3}, 4, v{vt+3}
    v_add_u32 v{vt+2}, v{vt+2}, v{vt+3}
    v_add_u32 v{vXr}, s82, v{vt+2}
    v_xor_b32 v{vXr+1}, 64, v{vXr}
    v_add_u32 v{vT2}, 65536, v{vXr}
    v_add_u32 v{vT2+1}, 65536, v{vXr+1}
    v_lshlrev_b32 v{vt+2}, 4, v{vt+1}
    s_lshl_b32 s42, s15, 14
    s_lshl_b32 s43, s17, 12
    s_add_u32 s42, s42, s43
    s_lshl_b32 s43, s34, 11
    s_add_u32 s52, s42, s43
    v_add_u32 v{vS01}, s52, v{vt+2}
    s_xor_b32 s43, s43, 2048
    s_add_u32 s52, s42, s43
    v_add_u32 v{vS23}, s52, v{vt+2}
    s_lshl_b32 s60, s18, 18
    s_add_u32 s61, s60, {1<<17}
    s_add_u32 s62, s60, {2<<17}
    s_add_u32 s63, s60, {3<<17}
    s_lshl_b32 s35, s19, 1
    s_add_u32 s35, s35, s33
    s_lshl_b32 s35, s35, 17
    """
    late_setup = f"""
    v_lshrrev_b32 v{vt+2}, 4, v{vt+1}
    v_lshlrev_b32 v{vt+2}, 9, v{vt+2}
    v_bfe_u32 v{vt+3}, v{vt+1}, 2, 2
    v_lshlrev_b32 v{vt+3}, 6, v{vt+3}
    v_add_u32 v{vt+2}, v{vt+2}, v{vt+3}
    v_and_b32 v{vt+3}, 3, v{vt+1}
    v_lshlrev_b32 v{vt+3}, 3, v{vt+3}
    v_add_u32 v{vt+2}, v{vt+2}, v{vt+3}
    v_bfe_u32 v{vt+3}, v{vt+1}, 4, 1
    v_lshlrev_b32 v{vt+3}, 5, v{vt+3}
    v_add_u32 v{vT2}, v{vt+2}, v{vt+3}
    v_xor_b32 v{vt+3}, 32, v{vt+3}
    v_add_u32 v{vT2+1}, v{vt+2}, v{vt+3}
    v_add_u32 v{vT2+2}, {WINS[1]}, v{vT2}
    v_add_u32 v{vT2+3}, {WINS[1]}, v{vT2+1}
    v_add_u32 v{vT2+4}, {WINS[2]}, v{vT2}
    v_add_u32 v{vT2+5}, {WINS[2]}, v{vT2+1}
    """
    stages = []
    for k in range(9): stages.append((0, [2*k, 2*k+1], (k % 4)*16384, 2))
    ring = [65536, 98304, 131072, 0, 32768]
    for k in range(6): stages.append((1, [3*k, 3*k+1, 3*k+2], ring[k % 5], 3))
    for k in range(3): stages.append((2, list(range(6*k, 6*k+6)), ring[(6+k) % 5], 3))
    NST = len(stages)
    blocks = []
    first = {}; last = {}
    for s, (p, kl, base, nb) in enumerate(stages):
        per = len(kl)//nb
        first[s] = len(blocks)
        for b in range(nb): blocks.append((p, kl[b*per:(b+1)*per], s, b))
        last[s] = len(blocks) - 1
    NB = len(blocks)
    def ssize(s): return len(stages[s][1]) * (8192 if stages[s][0] < 2 else 4096)
    avail = {}
    for s in range(NST):
        lo, hi = stages[s][2], stages[s][2] + ssize(s)
        e = -1
        for u in range(s):
            if stages[u][2] < hi and lo < stages[u][2] + ssize(u): e = max(e, last[u])
        for g in range(9):
            xl = XST + (g % 3)*32768
            if xl < hi and lo < xl + 32768: e = max(e, 2*g)
        avail[s] = e
    def lds_off(s, kidx):
        return stages[s][2] + kidx*(8192 if stages[s][0] < 2 else 4096)
    def dma_ops(s):
        p, kl = stages[s][:2]
        ops = []
        if "nodma" in opt and s > 0: return ops
        for kidx, ks in enumerate(kl):
            o = lds_off(s, kidx)
            if p < 2 and ROT:
                ops.append(lambda o=o: S(f"s_add_u32 m0, s51, {o}"))
                if p == 1 and ks == 0: ops.append(lambda: S(f"v_add_u32 v{vW}, 128, v{vW}"))
                ops.append(lambda ks=ks: S(f"s_mul_i32 s53, s{XT0+ks//2}, 4608" if ks % 2 == 0 else "s_add_u32 s53, s53, 294912"))
                ops.append(lambda: S.vmem(f"buffer_load_dwordx4 v{vW}, s[20:23], s53 offen lds", ("W", s)))
                ops.append(lambda: S.vmem(f"buffer_load_dwordx4 v{vW}, s[24:27], s53 offen offset:1024 lds", ("W", s)))
            elif ROT:
                ops.append(lambda o=o: S(f"s_add_u32 m0, s55, {o}"))
                ops.append(lambda ks=ks: S(f"s_mul_i32 s53, s{XT0+ks//2}, 4608" if ks % 2 == 0 else "s_add_u32 s53, s53, 294912"))
                ops.append(lambda: S.vmem(f"buffer_load_dwordx4 v{vW2}, s[56:59], s53 offen lds", ("W", s)))
            elif p < 2:
                ops.append(lambda o=o: S(f"s_add_u32 m0, s51, {o}"))
                ops.append(lambda ks=ks: S(f"s_add_u32 s52, s{48+p}, {ks*32*9216}"))
                ops.append(lambda: S.vmem(f"buffer_load_dwordx4 v{vW}, s[20:23], s52 offen{DNT} lds", ("W", s)))
                ops.append(lambda: S.vmem(f"buffer_load_dwordx4 v{vW}, s[24:27], s52 offen offset:1024{DNT} lds", ("W", s)))
            else:
                ops.append(lambda o=o: S(f"s_add_u32 m0, s55, {o}"))
                ops.append(lambda ks=ks: S(f"s_add_u32 s52, s50, {ks*32*9216}"))
                ops.append(lambda: S.vmem(f"buffer_load_dwordx4 v{vW2}, s[56:59], s52 offen{DNT} lds", ("W", s)))
        return ops
    def xload_ops(g):
        if "noxl" in opt and g > 0: return []
        ops = []
        if g >= 3: ops.append(lambda: S.wait_ds({("x", 2*(g-3)+kk, rt) for kk in range(2) for rt in range(4)}))
        for h in range(2):
            ops.append(lambda h=h: S(f"s_add_u32 m0, s82, {(g % 3)*32768 + h*4096}"))
            ops.append(lambda h=h: S(f"s_add_u32 s52, s{80+h}, " + (f"s{XT0+g}" if ROT else f"{g*128}")))
            for b in range(4):
                ops.append(lambda b=b: S.vmem(f"buffer_load_dwordx4 v{vX+b}, s[8:11], s52 offen offset:{b*1024}{DXNT} lds", ("X", g)))
        return ops
    def xr_ops(g):
        if "noxr" in opt and g > 0: return []
        o = (g % 3)*32768
        br = vXr
        if o >= 65536: o -= 65536; br = vT2
        return [lambda kk=kk, rt=rt: S.lds(f"ds_read_b128 {xreg(2*g+kk, rt)}, v{br+kk} offset:{o + rt*2048}", ("x", 2*g+kk, rt)) for kk in range(2) for rt in range(4)]
    cur_tr = [0]
    def tr(r, basereg, nlo, off):
        tag = ("A", r & ~3, cur_tr[0])
        if "notr" in opt and cur_tr[0] > 0: return
        w = 2 if off >= WINS[2] else (1 if off >= WINS[1] else 0)
        S.lds(f"ds_read_b64_tr_b16 v[{r}:{r+1}], v{basereg+nlo*w} offset:{off-WINS[w]}", tag)
    def tr_ops(bi):
        p, kl, s, b = blocks[bi]
        buf = AF + (bi % 2)*32
        ops = []
        if p < 2:
            base = lds_off(s, b)
            for j in range(4):
                for mat in range(2):
                    r = buf + (j*2+mat)*4
                    ops.append(lambda r=r, j=j, o=base+mat*1024: tr(r, vT+j, 4, o))
                    ops.append(lambda r=r, j=j, o=base+mat*1024+512: tr(r+2, vT+j, 4, o))
        else:
            for kk in range(2):
                base = lds_off(s, 2*b+kk)
                for j in range(2):
                    for mat in range(2):
                        r = buf + (kk*4+j*2+mat)*4
                        ops.append(lambda r=r, j=j, o=base+mat*2048: tr(r, vT2+j, 2, o))
                        ops.append(lambda r=r, j=j, o=base+mat*2048+256: tr(r+2, vT2+j, 2, o))
        return ops
    def mfma_list(bi):
        p, kl, s, b = blocks[bi]
        buf = AF + (bi % 2)*32
        L = []
        nj = 4 if p < 2 else 2
        nrt = 4 if p < 2 else 2
        for kk, ks in enumerate(kl):
            order = []
            if ks in (0, 17):
                for t in range(nj//2):
                    for rt in range(nrt):
                        for jj in range(2):
                            for mat in range(2): order.append((2*t+jj, mat, rt))
            else:
                for j in range(nj):
                    for mat in range(2):
                        for rt in range(nrt): order.append((j, mat, rt))
            for n, (j, mat, rt) in enumerate(order):
                d = acc(mat, j, rt); A = buf + (kk*4 + j*2+mat)*4
                c = "0" if ks == 0 else f"v[{d}:{d+3}]"
                L.append((f"v_mfma_f32_16x16x32_bf16 v[{d}:{d+3}], v[{A}:{A+3}], {xreg(ks,rt)}, {c}", (j//2, rt), ks, n, {("A", A, bi), ("x", ks, rt)}))
        return L
    def epi_ops(p, t, rt):
        ops = []
        g0, u0, g1, u1 = acc(0,2*t,rt), acc(1,2*t,rt), acc(0,2*t+1,rt), acc(1,2*t+1,rt)
        for r in range(4): ops.append(lambda r=r: S(f"v_mul_f32 v{g0+r}, v{g0+r}, v{u0+r}"))
        for r in range(4): ops.append(lambda r=r: S(f"v_mul_f32 v{g1+r}, v{g1+r}, v{u1+r}"))
        ops.append(lambda: S(f"v_cvt_pk_bf16_f32 v{u0}, v{g0}, v{g0+1}"))
        ops.append(lambda: S(f"v_cvt_pk_bf16_f32 v{u0+1}, v{g0+2}, v{g0+3}"))
        ops.append(lambda: S(f"v_cvt_pk_bf16_f32 v{u0+2}, v{g1}, v{g1+1}"))
        ops.append(lambda: S(f"v_cvt_pk_bf16_f32 v{u0+3}, v{g1+2}, v{g1+3}"))
        def st():
            so = f"s{60+2*p+t}" if p < 2 else "s35"
            vs = vS01 if rt < 2 else vS23
            if do_store:
                S.vmem(f"buffer_store_dwordx4 v[{u0}:{u0+3}], v{vs}, s[36:39], {so} offen offset:{(rt&1)*1024} {stflags}", ("S", p))
        ops.append(st)
        return ops
    nstamp = [0]
    def tstamp():
        if fine and nstamp[0] < 16:
            k = nstamp[0]
            r = stamp_reg(k)
            S(f"s_memtime s[{r}:{r+1}]"); nstamp[0] += 1
    def stamp_reg(k):
        if k >= 12: return 46
        return 64+2*k if k < 8 else 94+2*(k-8)
    tstamp()
    def run(ops):
        prev_m0 = False
        for f in ops: f()
    pro = opt.split(",")
    PACE = int(pro[0]) if pro[0] else 4
    def cpf():
        S(f"""
        s_getpc_b64 s[44:45]
        {name}_pc:
        v_lshlrev_b32 v{ACC+16}, 6, v0
        v_add_u32 v{ACC+17}, 16384, v{ACC+16}
        v_min_u32 v{ACC+17}, {name}_end-{name}_pc, v{ACC+17}
        """)
        S.vmem(f"global_load_dword v{ACC+18}, v{ACC+16}, s[44:45]", "pf")
        S.vmem(f"global_load_dword v{ACC+19}, v{ACC+17}, s[44:45]", "pf")
    if "cpf0" in pro: cpf()
    run(dma_ops(0)); run(xload_ops(0))
    if "cpf" in pro: cpf()
    run(dma_ops(1)); run(xload_ops(1))
    S(rest_setup)
    run(dma_ops(2)); run(xload_ops(2)); run(dma_ops(3))
    if "wpf" in pro:
        S(f"""
        s_lshl_b32 s93, s13, 8
        v_add_u32 v{ACC+3}, s93, v0
        v_mul_u32_u24 v{ACC+4}, 7282, v{ACC+3}
        v_lshrrev_b32 v{ACC+4}, 16, v{ACC+4}
        v_mul_u32_u24 v{ACC+5}, 9, v{ACC+4}
        v_sub_u32 v{ACC+5}, v{ACC+3}, v{ACC+5}
        v_mul_u32_u24 v{ACC+4}, 9216, v{ACC+4}
        v_lshl_add_u32 v{ACC+4}, v{ACC+5}, 7, v{ACC+4}
        s_mul_i32 s93, s12, 1152
        """)
        S.vmem(f"buffer_load_dword v{ACC+6}, v{ACC+4}, s[20:23], s93 offen{WNT}", "pf")
        S.vmem(f"buffer_load_dword v{ACC+7}, v{ACC+4}, s[24:27], s93 offen offset:1024{WNT}", "pf")
    if "xpf" in pro:
        S(f"""
        s_mul_i32 s93, s13, {576*128}
        v_lshlrev_b32 v{ACC+9}, 7, v0
        """)
        S.vmem(f"buffer_load_dword v{ACC+10}, v{ACC+9}, s[8:11], s93 offen{XNT}", "pf")
        S(f"s_add_u32 s93, s93, {256*128}")
        S.vmem(f"buffer_load_dword v{ACC+11}, v{ACC+9}, s[8:11], s93 offen{XNT}", "pf")
        S(f"s_add_u32 s93, s93, {64*128}")
        S.vmem(f"buffer_load_dword v{ACC+12}, v{ACC+9}, s[8:11], s93 offen{XNT}", "pf")
    tstamp()
    S.wait_vm({("X",0)})
    run(xr_ops(0))
    S("s_barrier")
    tstamp()
    cur_tr[0] = 0
    run(tr_ops(0))
    pending_epi = []
    vq = []
    later = []
    next_dma = 4
    gslot = [0, 0]
    for bi in range(NB):
        p, kl, s, b = blocks[bi]
        M = mfma_list(bi)
        nm = len(M)
        cur_tr[0] = bi + 1
        sched = {}
        def at(slot, op): sched.setdefault(min(slot, nm-1), []).append(op)
        t = tr_ops(bi+1) if bi + 1 < NB else []
        t0 = 0
        if bi == last[s] and s + 1 < NST:
            t0 = 1
            def bar(s=s, bi=bi):
                nonlocal next_dma
                S.wait_vm({("W", s+1)})
                S.wait_ds_all()
                if "nobar" not in pro: S("s_barrier")
                while next_dma < NST and avail[next_dma] <= bi and first[next_dma] - bi <= 10:
                    vq.extend(dma_ops(next_dma)); next_dma += 1
            at(0, bar)
        if bi in (1,6,12,18,24,30,36,41): tstamp()
        span = nm - 4 - t0
        if p == 0 and (kl[0] % 2) == 1 and (kl[0]+1)//2 <= 8:
            xg = (kl[0]+1)//2
            r = xr_ops(xg)
            r[0:1] = [lambda f=r[0], xg=xg: (S.wait_vm({("X", xg)}), f())] if r else []
            t = t[:4] + r[:4] + t[4:8] + r[4:] + t[8:]
        if p == 0 and (kl[0] % 2) == 0 and kl[0]//2 + 3 <= 8:
            vq.extend(xload_ops(kl[0]//2 + 3))
        if PPF is not None and bi == PPF:
            pf = f"""
            v_min_u32 v{vt+2}, 17, v{vt+1}
            s_mul_i32 s44, s15, 72
            s_mul_i32 s45, s17, 18
            s_add_u32 s44, s44, s45
            v_add_u32 v{vt+2}, s44, v{vt+2}
            v_mul_u32_u24 v{vt+2}, 9216, v{vt+2}
            v_add_u32 v{vt+2}, s49, v{vt+2}
            v_subrev_u32 v{vt+3}, 32, v{vt+1}
            v_min_u32 v{vt+3}, 4, v{vt+3}
            s_mul_i32 s44, s13, 18
            s_mul_i32 s45, s17, 5
            s_add_u32 s44, s44, s45
            v_add_u32 v{vt+3}, s44, v{vt+3}
            v_mul_u32_u24 v{vt+3}, 9216, v{vt+3}
            s_lshl_b32 s44, s19, 7
            v_add_u32 v{vt+3}, s44, v{vt+3}
            v_cmp_gt_u32 vcc, 32, v{vt+1}
            s_nop 0
            v_cndmask_b32 v{vt+2}, v{vt+3}, v{vt+2}, vcc
            """
            vq.extend([(lambda l=l: S(l)) for l in pf.strip().split("\n")])
            vq.append(lambda: S.vmem(f"buffer_load_dword v{vt+3}, v{vt+2}, s[20:23], 0 offen", "pf"))
            vq.append(lambda: S.vmem(f"buffer_load_dword v{vt+4}, v{vt+2}, s[24:27], 0 offen offset:1024", "pf"))
        if bi == 22: vq.extend([(lambda l=l: S(l)) for l in late_setup.strip().split("\n")])
        for k, f in enumerate(t): at(t0 + (k*span)//len(t), f)
        for mi, (m, unit, ks, n, need) in enumerate(M):
            if ks == 0:
                lastq = max([k for k, e in enumerate(pending_epi) if e[2] == unit], default=-1)
                if lastq >= 0:
                    print("WARNING: forced flush of", lastq+1, "epi ops at", bi, mi)
                    for _ in range(lastq+1): pending_epi.pop(0)[1]()
                    S("s_nop 1")
            n0 = len(a.lines)
            S.wait_ds(need)
            S(m)
            nmf = len(a.lines)
            for f in sched.get(mi, []): f()
            cap = 3 if "cap2" not in pro else 2
            if len(pending_epi) > 30: cap += 1
            while pending_epi and pending_epi[0][0] <= len(a.lines) and len(a.lines) - n0 < cap:
                pending_epi.pop(0)[1]()
            gslot[0] += 1
            while vq and len(a.lines) - n0 < 3 and gslot[0] >= gslot[1] and not pending_epi:
                nv = len(S.vm)
                vq.pop(0)()
                if len(S.vm) > nv: gslot[1] = gslot[0] + PACE
            if ks == 17 and (n+1) % 4 == 0:
                tt, rt = unit
                for op in epi_ops(p, tt, rt): pending_epi.append((nmf + 8, op, unit))
    assert not vq and not later, (len(vq), len(later))
    S("s_nop 7")
    S("s_nop 1")
    while pending_epi: pending_epi.pop(0)[1]()
    tstamp()
    if fine:
        S("s_waitcnt vmcnt(0)")
        tstamp()
        a(f"""
        s_waitcnt lgkmcnt(0)
        s_add_u32 s36, s4, {stamp_off}
        s_addc_u32 s37, s5, 0
        s_mov_b32 s38, 0x10000
        s_mov_b32 s39, 0x20000
        s_lshl_b32 s26, s2, 8
        s_lshl_b32 s27, s17, 6
        s_add_u32 s26, s26, s27
        v_mov_b32 v8, s26
        """)
        for k in range(16): a(f"v_mov_b32 v{16+k}, s{stamp_reg(k)}")
        a(f"""
        v_cmp_eq_u32 vcc, 0, v{vt+1}
        s_and_saveexec_b64 s[44:45], vcc
        buffer_store_dwordx4 v[16:19], v8, s[36:39], 0 offen
        buffer_store_dwordx4 v[20:23], v8, s[36:39], 0 offen offset:16
        buffer_store_dwordx4 v[24:27], v8, s[36:39], 0 offen offset:32
        buffer_store_dwordx4 v[28:31], v8, s[36:39], 0 offen offset:48
        """)
    elif stamp:
        a(f"""
        s_waitcnt vmcnt(0)
        s_memrealtime s[42:43]
        s_waitcnt lgkmcnt(0)
        s_add_u32 s36, s4, {stamp_off}
        s_addc_u32 s37, s5, 0
        s_mov_b32 s38, 0x10000
        s_mov_b32 s39, 0x20000
        v_mov_b32 v4, 0
        v_mov_b32 v5, s40
        v_mov_b32 v6, s42
        v_mov_b32 v7, 0
        s_mul_i32 s26, s2, 64
        s_lshl_b32 s27, s17, 4
        s_add_u32 s26, s26, s27
        v_mov_b32 v8, s26
        v_cmp_eq_u32 vcc, 0, v{vt+1}
        s_and_saveexec_b64 s[44:45], vcc
        buffer_store_dwordx4 v[4:7], v8, s[36:39], 0 offen
        """)
    a(f"{name}_end:")
    a("s_endpgm")
    a.end_kernel(name, 512, accum=256)
    return G1_LDS

if __name__ == "__main__":
    import argparse
    ap = argparse.ArgumentParser()
    ap.add_argument("out"); ap.add_argument("--st", default=""); ap.add_argument("--nostore", action="store_true"); ap.add_argument("--fine", action="store_true"); ap.add_argument("--opt", default="")
    x = ap.parse_args()
    a = Asm()
    lds = gen_gemm1(a, "g1_kernel", stflags=x.st, do_store=not x.nostore, fine=x.fine, opt=x.opt)
    a.launch("g1_kernel", (256,1,1), (256,1,1), lds)
    open(x.out, "w").write(a.text())
```

```python
import sys, math, struct
from asmlib import Asm
LOG2E = 1.4426950408889634
def f32(x): return struct.unpack("<I", struct.pack("<f", x))[0]
def f32v(x): return struct.unpack("<f", struct.pack("<f", x))[0]
SCR_PITCH = 144
SCR_SIZE = 64*SCR_PITCH
BURST = len(sys.argv) > 2
KX_PITCH = 4352

def emit_kgen2_pre(a, vlane, V, s_scr):
    R = {}
    nxt = [V]
    def alloc(n, al=2):
        r = (nxt[0] + al - 1)//al*al; nxt[0] = r + n; return r
    R["alloc"] = alloc; R["nxt"] = nxt
    vW, vR, vO1, vO2, vO3 = [alloc(1,1) for _ in range(5)]
    R.update(vW=vW, vR=vR, vO1=vO1, vO2=vO2, vO3=vO3)
    R["dt"] = alloc(1,1)
    tmp = alloc(8, 4); R["tmp"] = tmp
    a(f"""
    v_mul_u32_u24 v{vW}, {SCR_PITCH}, v{vlane}
    v_add_u32 v{vW}, s{s_scr}, v{vW}
    v_lshrrev_b32 v{tmp}, 4, v{vlane}
    v_and_b32 v{tmp+1}, 15, v{vlane}
    v_and_b32 v{tmp+2}, 1, v{tmp}
    v_lshrrev_b32 v{tmp+3}, 1, v{tmp}
    v_lshl_add_u32 v{tmp+2}, v{tmp+2}, 3, v{tmp+3}
    v_mul_u32_u24 v{vR}, {SCR_PITCH}, v{tmp+2}
    v_lshlrev_b32 v{tmp+2}, 3, v{tmp+1}
    v_add_u32 v{vR}, v{vR}, v{tmp+2}
    v_add_u32 v{vR}, s{s_scr}, v{vR}
    v_lshlrev_b32 v{tmp+2}, 5, v{tmp+1}
    v_lshl_add_u32 v{vO1}, v{tmp}, 3, v{tmp+2}
    v_lshl_add_u32 v{vO3}, v{tmp}, 9, v{tmp+2}
    v_and_b32 v{tmp+3}, 1, v{tmp}
    v_lshl_add_u32 v{vO2}, v{tmp+3}, 4, v{tmp+2}
    v_lshrrev_b32 v{tmp+3}, 1, v{tmp}
    v_lshl_add_u32 v{vO2}, v{tmp+3}, 9, v{vO2}
    """)
    return R

def emit_kgen2(a, R, vp, AB, srd, s_row, smask, vmem=None, stamp=None, NSLOT=30):
    alloc = R["alloc"]; tmp = R["tmp"]; dt = R["dt"]
    vW, vR, vO1, vO2, vO3 = R["vW"], R["vR"], R["vO1"], R["vO2"], R["vO3"]
    if vmem is None: vmem = a
    lam = [alloc(2), alloc(2)]
    stg = [alloc(4, 4) for _ in range(4)]
    D = [alloc(4, 4) for _ in range(2)]
    OUT = alloc(8, 4)
    one = alloc(2)
    slots = [alloc(4, 2) for _ in range(NSLOT)]
    QF = AB; AFb = [AB+32, AB+64]
    free = list(range(NSLOT))
    loc = {}
    slot_of = {}
    def new(name):
        s = free.pop(0); slot_of[name] = s; loc[name] = [slots[s], slots[s]+2]; return loc[name]
    loc["q0"] = [one, one]
    def cmul(dst, x, y):
        d = new(dst); x = loc[x]; y = loc[y]
        for z in range(2): a(f"v_pk_mul_f32 v[{d[z]}:{d[z]+1}], v[{x[z]}:{x[z]+1}], v[{y[z]}:{y[z]+1}] op_sel_hi:[0,1]")
        for z in range(2): a(f"v_pk_fma_f32 v[{d[z]}:{d[z]+1}], v[{x[z]}:{x[z]+1}], v[{y[z]}:{y[z]+1}], v[{d[z]}:{d[z]+1}] op_sel:[1,1,0] op_sel_hi:[1,0,1] neg_lo:[1,0,0]")
    Lh = f32v(LOG2E); Ll = LOG2E - Lh
    a(f"""
    v_mul_f32 v{tmp}, 0x{f32(Lh):08x}, v{vp+6}
    v_mov_b32 v{tmp+2}, 0x{f32(Lh):08x}
    v_fma_f32 v{tmp+1}, v{vp+6}, v{tmp+2}, -v{tmp}
    v_mov_b32 v{tmp+2}, 0x{f32(Ll):08x}
    v_exp_f32 v{tmp}, v{tmp}
    v_fma_f32 v{tmp+1}, v{vp+6}, v{tmp+2}, v{tmp+1}
    v_mul_f32 v{tmp+1}, 0x{f32(math.log(2)):08x}, v{tmp+1}
    v_fma_f32 v{tmp}, v{tmp}, v{tmp+1}, v{tmp}
    v_cvt_pk_bf16_f32 v{tmp}, v{tmp}, v{tmp}
    v_lshlrev_b32 v{dt}, 16, v{tmp}
    """)
    Bv = new("B"); Cv = new("C")
    for (dst, k) in ((lam, 0), (Bv, 2), (Cv, 4)):
        for c in range(2):
            a(f"v_lshlrev_b32 v{dst[0]+c}, 16, v{vp+k+c}")
            a(f"v_and_b32 v{dst[1]+c}, s{smask}, v{vp+k+c}")
    a(f"v_mov_b32 v{tmp}, 0x{f32(LOG2E):08x}")
    a(f"v_mov_b32 v{tmp+1}, 0x{f32(0.5/math.pi):08x}")
    for z in range(2):
        a(f"v_pk_mul_f32 v[{lam[z]}:{lam[z]+1}], v[{lam[z]}:{lam[z]+1}], v[{dt & ~1}:{(dt & ~1)+1}] op_sel:[0,{dt&1}] op_sel_hi:[1,{dt&1}]")
        a(f"v_pk_mul_f32 v[{Bv[z]}:{Bv[z]+1}], v[{Bv[z]}:{Bv[z]+1}], v[{dt & ~1}:{(dt & ~1)+1}] op_sel:[0,{dt&1}] op_sel_hi:[1,{dt&1}]")
    for z in range(2):
        a(f"v_pk_mul_f32 v[{lam[z]}:{lam[z]+1}], v[{lam[z]}:{lam[z]+1}], v[{tmp}:{tmp+1}]")
    a(f"v_mov_b32 v{one}, 1.0")
    a(f"v_mov_b32 v{one+1}, 0")
    def direct(name, m, conj=False, T=tmp):
        dst = new(name)
        for z in range(2):
            t = T + 4*z
            if m != 1:
                a(f"v_mul_f32 v{t}, 0x{f32(float(m)):08x}, v{lam[z]}")
                a(f"v_mul_f32 v{t+1}, 0x{f32(float(-m if conj else m)):08x}, v{lam[z]+1}")
                a(f"v_exp_f32 v{t}, v{t}")
                a(f"v_fract_f32 v{t+1}, v{t+1}")
            else:
                a(f"v_exp_f32 v{t}, v{lam[z]}")
                a(f"v_fract_f32 v{t+1}, v{lam[z]+1}")
        for z in range(2):
            t = T + 4*z
            a(f"v_cos_f32 v{t+2}, v{t+1}")
            a(f"v_sin_f32 v{t+3}, v{t+1}")
        return lambda: [a(f"v_pk_mul_f32 v[{dst[z]}:{dst[z]+1}], v[{T+4*z+2}:{T+4*z+3}], v[{T+4*z}:{T+4*z+1}] op_sel_hi:[1,0]") for z in range(2)]
    f1 = direct("q1", 16, conj=True, T=tmp)
    f2 = direct("e1", 1, T=OUT)
    f1()
    cmul("p0", "C", "B")
    f2()
    f3 = direct("F", 256, T=stg[0])
    assert stg[1] == stg[0] + 4
    C = []
    C += [("q2","q1","q1"),("q3","q2","q1"),("q4","q2","q2"),("q5","q4","q1"),("q6","q4","q2"),("q7","q4","q3"),("q8","q4","q4")]
    C += [("e2","e1","e1")]
    C += [(f"q{r}","q8",f"q{r-8}") for r in range(9,16)]
    C += [("e4","e2","e2"),("p1","p0","e1"),("p2","p0","e2"),("p3","p1","e2"),("e8","e4","e4")]
    C += [(f"p{4+r}",f"p{r}","e4") for r in range(4)]
    C += [(f"p{8+r}",f"p{r}","e8") for r in range(8)]
    C += [("a0","p0","F"),("a1","p2","F"),("b0","a0","F"),("a2","p4","F"),("c0","b0","F"),("a3","p6","F"),("d00","c0","F"),("a4","p8","F"),("d10","d00","F"),
          ("a5","p10","F"),("d20","d10","F"),("a6","p12","F"),("d30","d20","F"),("a7","p14","F"),("a8","a4","e8")]
    C += [(f"b{j}",f"a{2*j}","F") for j in range(1,5)]
    C += [(f"c{j}",f"b{j}","F") for j in range(1,5)]
    C += [(f"d{q}1",f"d{q}0","e8") for q in range(4)]
    tiles = [
        [[(f"q{2*k}",f"q{2*k+1}") for k in range(4)], [(f"q{8+2*k}",f"q{9+2*k}") for k in range(4)]],
        [[(f"p{2*k}",f"p{2*k+1}") for k in range(4)], [(f"p{8+2*k}",f"p{9+2*k}") for k in range(4)]],
        [[("a0","a1"),("a2","d00"),("a2","a3"),("a4","d10")], [("a4","a5"),("a6","d20"),("a6","a7"),("a8","d30")]],
        [[("b0","b1"),("b2","d01"),("b2","b3"),("b4","d11")], [("c0","c1"),("c2","d21"),("c2","c3"),("c4","d31")]],
    ]
    NT = len(tiles)
    groups = []
    for t, T in enumerate(tiles):
        for h in range(2):
            for z in range(2):
                for c in range(2): groups.append((t, h, z, c, T[h]))
    uses = {}
    for (d, x, y) in C:
        for s in {x, y}: uses[s] = uses.get(s, 0) + 1
    for g in groups:
        for s in {n for p in g[4] for n in p}: uses[s] = uses.get(s, 0) + 1
    uses['d30'] += 1; uses['F'] += 1
    def release(names):
        for s in names:
            uses[s] -= 1
            if uses[s] == 0 and s in slot_of: free.append(slot_of[s])
    free.append(slot_of["B"]); free.append(slot_of["C"])
    done = {"q0","q1","e1","p0"}
    nds = [0]
    rd_end = {}
    side = []
    def rd_ops(t):
        dst = QF if t == 0 else AFb[t % 2]
        ops = []
        for s in range(8):
            for h in range(2):
                r = dst + 4*s + 2*h
                ops.append(("ds", f"ds_read_b64_tr_b16 a[{r}:{r+1}], v{vR} offset:{(16*((2*s+h)>>2) + 2*((2*s+h)&3))*SCR_PITCH}"))
        return ops
    def mm_ops(t):
        A = AFb[t % 2]; d = D[t % 2]
        ops = [("waitrd", t)]
        for s in range(8):
            c = "0" if s == 0 else f"v[{d}:{d+3}]"
            ops.append(("m", f"v_mfma_f32_16x16x32_bf16 v[{d}:{d+3}], a[{A+4*s}:{A+4*s+3}], a[{QF+4*s}:{QF+4*s+3}], {c}"))
        return ops
    KL = alloc(2)
    def ep_ops(t):
        d = D[t % 2]
        pk = lambda o, x, y: ("v", f"v_cvt_pk_bf16_f32 v{OUT+o}, v{d+x}, v{d+y}")
        if t == 1: return [pk(0,0,1), pk(1,2,3), ("st", f"buffer_store_dwordx2 v[{OUT}:{OUT+1}], v{vO1}, s[{srd}:{srd+3}], s{s_row} offen")]
        if t == 2: return [pk(2,0,0), pk(3,1,2), ("v", f"v_mov_b32_dpp v{KL}, v{d+3} wave_shl:1 row_mask:0xf bank_mask:0xf"),
                           ("st", f"buffer_store_dwordx2 v[{OUT+2}:{OUT+3}], v{vO1}, s[{srd}:{srd+3}], s{s_row} offen offset:512")]
        e = D[0] + 3; o = D[1] + 3
        pk2 = lambda k, x, y: ("v", f"v_cvt_pk_bf16_f32 v{tmp+k}, v{x}, v{y}")
        return [pk2(2,e,o), pk2(3,o,o), pk2(4,o,o), pk2(5,o,o), pk(4,0,0), pk(5,0,1), pk(6,1,1), pk(7,2,2),
                ("st", f"buffer_store_dwordx4 v[{tmp}:{tmp+3}], v{vO3}, s[{srd}:{srd+3}], s{s_row} offen offset:2048"),
                ("st", f"buffer_store_dwordx4 v[{tmp+4}:{tmp+7}], v{vO3}, s[{srd}:{srd+3}], s{s_row} offen offset:2064"),
                ("st", f"buffer_store_dwordx4 v[{OUT+4}:{OUT+7}], v{vO2}, s[{srd}:{srd+3}], s{s_row} offen offset:1024")]
    def last_ops():
        x = loc["d30"]; F = loc["F"]
        L = [f"v_mul_f32 v{KL}, v{x[0]}, v{F[0]}", f"v_mul_f32 v{KL+1}, v{x[1]}, v{F[1]}",
             f"v_fma_f32 v{KL}, -v{x[0]+1}, v{F[0]+1}, v{KL}", f"v_fma_f32 v{KL+1}, -v{x[1]+1}, v{F[1]+1}, v{KL+1}",
             f"v_add_f32 v{KL}, v{KL}, v{KL+1}"]
        for m in ("row_shr:1", "row_shr:2", "row_shr:4", "row_shr:8"):
            L.append(f"v_add_f32_dpp v{KL}, v{KL}, v{KL} {m} row_mask:0xf bank_mask:0xf bound_ctrl:0")
        L.append(f"v_add_f32_dpp v{KL}, v{KL}, v{KL} row_bcast:15 row_mask:0xa bank_mask:0xf")
        L.append(f"v_add_f32_dpp v{KL}, v{KL}, v{KL} row_bcast:31 row_mask:0xc bank_mask:0xf")
        return [("v", l) for l in L]
    def emit(k, o):
        if k == "ds": a(o); nds[0] += 1
        elif k == "st": vmem(o)
        elif k == "waitrd": a(f"s_waitcnt lgkmcnt({min(15, nds[0] - rd_end[o])})")
        else: a(o)
    need = [{n for h in T for p in h for n in p} for T in tiles]
    ci = 0; ns = 0; pend = []
    for t in range(NT):
        if stamp: stamp()
        side = pend; pend = []
        if t >= 1 and BURST:
            for o in side + rd_ops(t-1): emit(*o)
            side = []
        elif t >= 1: side += rd_ops(t-1)
        if t >= 3: side += ep_ops(t-2) + last_ops()
        lastc = max(k for k, c in enumerate(C) if c[0] in need[t])
        ncm = lastc + 1 - ci
        n0 = len(side); pos = 0
        for k in range(ncm):
            d, x, y = C[ci]; ci += 1
            l0 = len(a.lines)
            cmul(d, x, y); release({x, y})
            if ci == 1: f3()
            ins = a.lines[l0:]; del a.lines[l0:]
            for q, l in enumerate(ins):
                a.lines.append(l); pos += 1
                while side and n0 and (n0 - len(side)) * (4*ncm - 2) < pos * n0 and q % 2 == 1: emit(*side.pop(0))
        while side: emit(*side.pop(0))
        if t >= 1: rd_end[t-1] = nds[0]
        mm = mm_ops(t-1) if t >= 2 else []
        if stamp: stamp()
        if mm: emit(*mm.pop(0))
        for g in groups[8*t:8*t+8]:
            _, h, z, c, prs = g
            s = stg[ns % 4]; ns += 1
            for k, (x, y) in enumerate(prs): a(f"v_cvt_pk_bf16_f32 v{s+k}, v{loc[x][z]+c}, v{loc[y][z]+c}")
            if mm: emit(*mm.pop(0))
            if pend: emit(*pend.pop())
            pend.append(("ds", f"ds_write_b128 v{vW}, v[{s}:{s+3}] offset:{z*64 + c*32 + h*16}"))
            release({n for p in prs for n in p})
        if t == NT-1: emit(*pend.pop())
    if stamp: stamp()
    for o in rd_ops(3): emit(*o)
    rd_end[3] = nds[0]
    for o in ep_ops(2): emit(*o)
    a(f"v_cvt_pk_bf16_f32 v{tmp}, v{D[0]+3}, v{D[0]+3}")
    a(f"v_cvt_pk_bf16_f32 v{tmp+1}, v{D[0]+3}, v{D[0]+3}")
    a(f"v_cvt_pk_bf16_f32 v{tmp+6}, v{KL}, v{KL}")
    a(f"v_cvt_pk_bf16_f32 v{tmp+7}, v{KL}, v{KL}")
    mm = mm_ops(3); mm.pop(0)
    for s in range(8):
        a(f"s_waitcnt lgkmcnt({14-2*s})"); emit(*mm[s])
    a("s_nop 7")
    for o in ep_ops(3): emit(*o)
    return R["nxt"][0]

if __name__ == "__main__":
    from gen_ssm import emit_kgen_load
    a = Asm(); name = "k2_kernel"
    KX_OFF = 0x2000000
    a.begin_kernel(name)
    a(f"""
    s_cmp_ge_u32 s2, 256
    s_cbranch_scc1 {name}_end
    s_load_dwordx2 s[4:5], s[0:1], 128
    s_load_dwordx16 s[36:51], s[0:1], 8
    s_memtime s[64:65]
    v_lshrrev_b32 v2, 6, v0
    v_and_b32 v1, 63, v0
    s_mov_b32 s31, 0xffff0000
    s_nop 0
    v_readfirstlane_b32 s17, v2
    s_cmp_lt_u32 s2, 64
    s_cselect_b32 s16, 3, 2
    s_lshl_b32 s18, s17, 8
    s_add_u32 s18, s18, s2
    s_mul_i32 s19, s17, {SCR_SIZE}
    s_mul_i32 s20, s18, {KX_PITCH}
    s_add_u32 s20, s20, 128
    s_waitcnt lgkmcnt(0)
    s_add_u32 s8, s4, {KX_OFF}
    s_addc_u32 s9, s5, 0
    s_mov_b32 s10, {576*KX_PITCH}
    s_mov_b32 s11, 0x20000
    s_cmp_ge_u32 s17, s16
    s_cbranch_scc1 {name}_kdone
    """)
    emit_kgen_load(a, 1, 8, 2, 36, 18, 21)
    R = emit_kgen2_pre(a, 1, 16, 19)
    a("s_waitcnt vmcnt(0)")
    a("s_memtime s[66:67]")
    n0 = len(a.lines)
    ks = [2]
    def stamp():
        a(f"s_memtime s[{64+2*ks[0]}:{65+2*ks[0]}]"); ks[0] += 1
    top = emit_kgen2(a, R, 8, 0, 8, 20, 31, stamp=stamp)
    print("kgen top", top, "instrs", len(a.lines) - n0)
    stamp()
    a(f"""
    s_waitcnt vmcnt(0) lgkmcnt(0)
    s_mov_b32 s36, s4
    s_mov_b32 s37, s5
    s_mov_b32 s38, 0x10000
    s_mov_b32 s39, 0x20000
    s_lshl_b32 s26, s2, 8
    s_lshl_b32 s27, s17, 6
    s_add_u32 s26, s26, s27
    v_mov_b32 v8, s26
    """)
    for k in range(16): a(f"v_mov_b32 v{16+k}, s{64+2*k}")
    a(f"""
    v_cmp_eq_u32 vcc, 0, v1
    s_and_saveexec_b64 s[44:45], vcc
    buffer_store_dwordx4 v[16:19], v8, s[36:39], 0 offen
    buffer_store_dwordx4 v[20:23], v8, s[36:39], 0 offen offset:16
    buffer_store_dwordx4 v[24:27], v8, s[36:39], 0 offen offset:32
    buffer_store_dwordx4 v[28:31], v8, s[36:39], 0 offen offset:48
    {name}_kdone:
    {name}_end:
    s_endpgm
    """)
    a.end_kernel(name, 512, accum=256)
    a.launch(name, (256,1,1), (256,1,1), 32768)
    open(sys.argv[1], "w").write(a.text())
```

```python
import sys, argparse
from asmlib import Asm
from gen_g1 import Stream
import gen_k2
from gen_k2 import emit_kgen2_pre, emit_kgen2, SCR_SIZE, KX_PITCH
gen_k2.BURST = True
LOG2E = 1.4426950408889634

FLG_OFF = 0x10000
H_OFF   = 0x100000
XT_OFF  = 0x1400000
AT_OFF  = 0x1700000
G_OFF   = 0x1A00000
P_OFF   = 0x1B00000
P8_OFF  = 0x2100000
KX_OFF  = 0x2200000
WS_USED = 0x2600000
XST = 65536
WINS = [0, 61440, 122880]
CP_PITCH = 4160
CB = [0, 21216, 42432]
UBO = 4*CP_PITCH
UST = [CB[0]+UBO+480, CB[1]+UBO+480, CB[2]+UBO+2016]
SCX = 90112
ATS = 69632
SPIN = 20000

sWS, sXP = 4, 6
SX, SWG, SWU, SWS, SW2, SDB = 8, 20, 24, 36, 40, 44
sG, sJ, sI, sMT, sGam, sW, sLC0, sLC2 = 12, 13, 14, 15, 16, 17, 18, 19
sHalf, sSwap, sHS2, sT0 = 32, 33, 34, 35
sB0, sB1, sB2, sW2k = 48, 49, 50, 51
pWd, pGw, pOut, pDbg = 52, 54, 56, 58
sHS = 60
pDs = 64
sSo, sW1k, sX0, sX1, sXb = 66, 67, 68, 69, 70
sT1, sT2, sT3, sT4, sT5 = 71, 72, 73, 74, 75
sSv = 76
sOnes, sMask = 30, 31
STAMP0 = 82
NSTAMP = 9
sDm, sDx = 100, 101

class Stream2(Stream):
    AGE = 8
    def __init__(self, a):
        super().__init__(a); self.dsg = []; self.now = 0
    def lds(self, s, tag=None):
        super().lds(s, tag); self.dsg.append(self.now)
    def wait_ds(self, tags):
        last = -1
        for i in range(len(self.ds)-1, self.ds_done, -1):
            if self.ds[i] in tags: last = i; break
        if last < 0: return 0
        while last + 1 < len(self.ds) and self.dsg[last+1] <= self.now - self.AGE: last += 1
        n = min(15, len(self.ds) - 1 - last)
        self.ds_done = len(self.ds) - 1 - n
        self.a(f"s_waitcnt lgkmcnt({n})"); return 1

def first_pair(T):
    for k in range(8):
        prs = [(k, d) for d in range(k+1) if k + d <= 7] + [(x, k) for x in range(k) if x + k <= 7]
        for p in prs:
            if p[0] + p[1] == T: return p

def gen_fused(a, name, fine=False, opt="", ws_base=0):
    S = Stream2(a)
    O = set(opt.split(","))
    def geto(key, dflt):
        for o in O:
            if o.startswith(key) and o[len(key):].lstrip("-").isdigit(): return int(o[len(key):])
        return dflt
    DNT = "" if "nodnt" in O else " nt"
    PACE = geto("pace", 4)
    S.AGE = geto("age", 8)
    slow = []
    nst = [0]; ndump = [0]
    def tstamp(g="a"):
        if fine and (g in fine or nst[0] == 0) and nst[0] < NSTAMP:
            r = STAMP0 + 2*nst[0]; S(f"s_memtime s[{r}:{r+1}]"); nst[0] += 1
    def dump(vb, lane):
        if not fine: return
        S("s_waitcnt lgkmcnt(0)"); S.ds_done = len(S.ds) - 1
        for k in range(12): S(f"v_mov_b32 v{vb+k}, s{STAMP0+2*min(k, NSTAMP-1)}")
        S(f"""
        s_lshl_b32 s{sT1}, s2, 8
        s_lshl_b32 s{sT2}, s{sW}, 6
        s_add_u32 s{sT1}, s{sT1}, s{sT2}
        s_add_u32 s{sT1}, s{sT1}, {0x2560000 + ndump[0]*0x10000}
        """)
        for k in range(3): S.vmem(f"buffer_store_dwordx4 v[{vb+4*k}:{vb+4*k+3}], off, s[{SWS}:{SWS+3}], s{sT1} offset:{16*k}", "dump")
        S("s_nop 1")
        ndump[0] += 1; nst[0] = 0
    ACC = 0; XV = 128; AF = 160; V = 224
    vT = V; vT2 = V+12; vW = V+18; vW2 = V+19; vX = V+20; vXr = V+24; vS01, vS23 = V+26, V+27
    vt = V+27; vL = vt+1
    def acc(mat, j, rt): return ACC + ((j*2+mat)*4+rt)*4
    def xreg(ks, rt):
        idx = ks*4+rt
        if idx < 64: return f"a[{idx*4}:{idx*4+3}]"
        r = XV + (idx-64)*4
        return f"v[{r}:{r+3}]"
    a.begin_kernel(name)
    a(f"""
    s_cmp_ge_u32 s2, 256
    s_cbranch_scc1 {name}_end
    s_load_dwordx2 s[{sWS}:{sWS+1}], s[0:1], 128
    s_load_dwordx2 s[{sXP}:{sXP+1}], s[0:1], 0
    s_load_dwordx16 s[36:51], s[0:1], 8
    s_load_dwordx4 s[28:31], s[0:1], 80
    s_load_dwordx8 s[52:59], s[0:1], 96
    """)
    tstamp()
    a(f"""
    s_and_b32 s{sG}, s2, 7
    s_lshr_b32 s{sJ}, s2, 3
    s_and_b32 s{sI}, s{sJ}, 3
    s_lshr_b32 s{sMT}, s{sJ}, 2
    v_lshrrev_b32 v{vt}, 6, v0
    v_and_b32 v{vL}, 63, v0
    s_lshr_b32 s{sGam}, s{sG}, 1
    v_readfirstlane_b32 s{sW}, v{vt}
    s_mul_i32 s{sT0}, s{sG}, 9
    s_lshl_b32 s{sLC0}, s{sI}, 1
    s_add_u32 s{sLC0}, s{sLC0}, s{sT0}
    s_add_u32 s{sLC2}, s{sT0}, 8
    s_and_b32 s{sHalf}, s{sI}, 1
    s_lshr_b32 s{sSwap}, s{sI}, 1
    v_lshrrev_b32 v{vt+2}, 3, v{vL}
    v_mul_u32_u24 v{vt+2}, 9216, v{vt+2}
    v_bfe_u32 v{vt+3}, v{vL}, 4, 1
    v_lshlrev_b32 v{vt+3}, 1, v{vt+3}
    s_and_b32 s{sT1}, s{sW}, 1
    s_lshl_b32 s{sT1}, s{sT1}, 2
    v_or_b32 v{vt+3}, s{sT1}, v{vt+3}
    v_and_b32 v{vt+4}, 7, v{vL}
    v_xor_b32 v{vt+3}, v{vt+3}, v{vt+4}
    v_lshlrev_b32 v{vt+3}, 4, v{vt+3}
    v_add_u32 v{vW}, v{vt+2}, v{vt+3}
    s_mul_i32 s{sT1}, s{sW}, {8*9216}
    v_add_u32 v{vW}, s{sT1}, v{vW}
    v_lshrrev_b32 v{vt+2}, 3, v{vL}
    v_mul_u32_u24 v{vt+2}, 1152, v{vt+2}
    v_lshrrev_b32 v{vt+3}, 4, v{vL}
    v_xor_b32 v{vt+3}, v{vt+3}, v{vt+4}
    v_lshlrev_b32 v{vt+3}, 4, v{vt+3}
    v_add_u32 v{vX}, v{vt+2}, v{vt+3}
    v_xor_b32 v{vt+3}, 64, v{vt+3}
    v_add_u32 v{vX+1}, v{vt+2}, v{vt+3}
    v_add_u32 v{vX+1}, 8192, v{vX+1}
    v_add_u32 v{vX+2}, 16384, v{vX}
    v_add_u32 v{vX+3}, 16384, v{vX+1}
    s_lshl_b32 s{sW1k}, s{sW}, 10
    s_lshl_b32 s{sT1}, s{sMT}, 8
    s_lshl_b32 s{sT2}, s{sW}, 6
    s_add_u32 s{sT1}, s{sT1}, s{sT2}
    s_lshl_b32 s{sT2}, s{sSwap}, 5
    s_add_u32 s{sX0}, s{sT1}, s{sT2}
    s_mul_i32 s{sX0}, s{sX0}, 1152
    s_xor_b32 s{sT2}, s{sT2}, 32
    s_add_u32 s{sX1}, s{sT1}, s{sT2}
    s_mul_i32 s{sX1}, s{sX1}, 1152
    s_lshl_b32 s{sXb}, s{sW}, 13
    s_add_u32 s{sXb}, s{sXb}, {XST}
    s_lshl_b32 s{sT3}, s{sW}, 8
    s_and_b32 s{sT1}, s2, 63
    s_cmp_lt_u32 s{sW}, 2
    s_cselect_b32 s{sT1}, s2, s{sT1}
    s_add_u32 s{sT3}, s{sT3}, s{sT1}
    s_lshl_b32 s{sT1}, s{sT3}, 8
    v_lshlrev_b32 v2, 2, v{vL}
    v_add_u32 v2, s{sT1}, v2
    s_lshl_b32 s{sT1}, s{sT3}, 1
    v_mov_b32 v3, s{sT1}
    v_lshrrev_b32 v4, 1, v{vL}
    v_mul_u32_u24 v4, 1152, v4
    v_and_b32 v5, 1, v{vL}
    v_lshl_add_u32 v4, v5, 4, v4
    v_lshrrev_b32 v5, 3, v{vL}
    v_mul_u32_u24 v5, 1152, v5
    v_lshlrev_b32 v6, 4, v{vt+4}
    v_add_u32 v5, v5, v6
    s_and_b32 s{sT4}, s2, 31
    s_lshr_b32 s{sT5}, s2, 5
    s_mul_i32 s{sT1}, s{sT5}, {256*1152}
    s_lshl_b32 s{sT2}, s{sT4}, 5
    s_add_u32 s{sT1}, s{sT1}, s{sT2}
    s_mul_i32 s{sT2}, s2, {8*1152}
    s_lshr_b32 s{sDm}, s{sW}, 1
    s_lshl_b32 s{sDm}, s{sDm}, 9
    s_lshl_b32 s{sDx}, s2, 1
    s_add_u32 s{sDm}, s{sDm}, s{sDx}
    s_and_b32 s{sDm}, s{sDm}, 0x3fc
    s_and_b32 s{sDx}, s{sDx}, 124
    s_add_u32 s{sDx}, s{sDx}, 1024
    s_waitcnt lgkmcnt(0)
    s_load_dword s{sDm}, s[50:51], s{sDm}
    s_load_dword s{sDx}, s[50:51], s{sDx}
    s_mov_b32 s{SX}, s{sXP}
    s_mov_b32 s{SX+1}, s{sXP+1}
    s_mov_b32 s{SX+2}, {2048*1152}
    s_mov_b32 s{SX+3}, 0x20000
    s_cmp_eq_u32 s{sW}, 3
    s_cbranch_scc1 {name}_pre3
    global_load_short_d16_hi v14, v3, s[48:49]
    """)
    for k in range(6): a(f"global_load_dword v{8+k}, v2, s[{36+2*k}:{37+2*k}]")
    a(f"s_branch {name}_prec")
    a(f"{name}_pre3:")
    XTS = 49152
    GX, GW = 48, 84
    def xt_dma(base):
        for k in range(8):
            a(f"s_mov_b32 m0, {base + k*1024}")
            if k: a(f"s_add_u32 s{sT1}, s{sT1}, {32*1152}")
            else: a("s_nop 0")
            a(f"buffer_load_dwordx4 v4, s[{SX}:{SX+3}], s{sT1} offen lds")
    xt_dma(XTS)
    a(f"""
    s_mov_b32 s{SW2}, s{pGw}
    s_mov_b32 s{SW2+1}, s{pGw+1}
    s_mov_b32 s{SW2+2}, 1152
    s_mov_b32 s{SW2+3}, 0x20000
    """)
    for k in range(9):
        a(f"buffer_load_dwordx4 v[{GX+4*k}:{GX+4*k+3}], v5, s[{SX}:{SX+3}], s{sT2} offen offset:{k*128}")
        a(f"buffer_load_dwordx4 v[{GW+4*k}:{GW+4*k+3}], v6, s[{SW2}:{SW2+3}], 0 offen offset:{k*128}")
    a(f"""
    s_cmp_ge_u32 s{sT4}, 4
    s_cbranch_scc1 {name}_prec
    s_sub_u32 s{sT1}, s{sT1}, {7*32*1152 - 1024}
    """)
    xt_dma(XTS + 8192)
    a(f"{name}_prec:")
    a(f"""
    s_mov_b32 s{SWG}, s28
    s_mov_b32 s{SWG+1}, s29
    s_mov_b32 s{SWG+2}, {576*9216}
    s_mov_b32 s{SWG+3}, 0x20000
    s_sub_u32 s{SWU}, s30, 1024
    s_subb_u32 s{SWU+1}, s31, 0
    s_mov_b32 s{SWU+2}, {576*9216+1024}
    s_mov_b32 s{SWU+3}, 0x20000
    s_lshl_b32 s{sB0}, s{sLC0}, 7
    s_add_u32 s{sB1}, s{sB0}, 128
    s_lshl_b32 s{sB2}, s{sLC2}, 7
    s_lshl_b32 s{sT0}, s{sHalf}, 6
    s_add_u32 s{sB2}, s{sB2}, s{sT0}
    s_lshl_b32 s{sW2k}, s{sW}, 11
    """)
    rest_setup = f"""
    s_add_u32 s{SWS}, s{sWS}, {ws_base}
    s_addc_u32 s{SWS+1}, s{sWS+1}, 0
    s_mov_b32 s{SWS+2}, {WS_USED}
    s_mov_b32 s{SWS+3}, 0x20000
    v_lshrrev_b32 v{vt+2}, 2, v{vL}
    v_mul_u32_u24 v{vt+2}, 9216, v{vt+2}
    v_lshrrev_b32 v{vt+3}, 5, v{vL}
    v_lshlrev_b32 v{vt+3}, 1, v{vt+3}
    v_and_b32 v{vt+4}, 3, v{vL}
    v_xor_b32 v{vt+3}, v{vt+3}, v{vt+4}
    v_lshlrev_b32 v{vt+3}, 4, v{vt+3}
    v_add_u32 v{vW2}, v{vt+2}, v{vt+3}
    s_and_b32 s{sT0}, s{sW}, 1
    s_mul_i32 s{sT0}, s{sT0}, {16*9216}
    v_add_u32 v{vW2}, s{sT0}, v{vW2}
    s_cmp_lt_u32 s{sW}, 2
    s_cselect_b32 s{SW2}, s28, s30
    s_cselect_b32 s{SW2+1}, s29, s31
    s_mov_b32 s{SW2+2}, {576*9216}
    s_mov_b32 s{SW2+3}, 0x20000
    s_mov_b32 s{SDB}, s{pDbg}
    s_mov_b32 s{SDB+1}, s{pDbg+1}
    s_mov_b32 s{SDB+2}, 256
    s_mov_b32 s{SDB+3}, 0x20000
    s_mov_b32 s{sOnes}, 0x3f803f80
    s_mov_b32 s{sMask}, 0xffff0000
    v_lshrrev_b32 v{vt+2}, 4, v{vL}
    v_lshlrev_b32 v{vt+2}, 11, v{vt+2}
    v_bfe_u32 v{vt+3}, v{vL}, 2, 2
    v_lshlrev_b32 v{vt+3}, 7, v{vt+3}
    v_add_u32 v{vt+2}, v{vt+2}, v{vt+3}
    v_and_b32 v{vt+3}, 3, v{vL}
    v_lshlrev_b32 v{vt+3}, 3, v{vt+3}
    v_add_u32 v{vt+2}, v{vt+2}, v{vt+3}
    v_bfe_u32 v{vt+3}, v{vL}, 3, 2
    v_lshlrev_b32 v{vt+3}, 5, v{vt+3}
    """
    for j in range(4):
        rest_setup += f"""
        v_xor_b32 v{vt+4}, {32*j}, v{vt+3}
        v_add_u32 v{vT+j}, v{vt+2}, v{vt+4}
        v_add_u32 v{vT+4+j}, {WINS[1]}, v{vT+j}
        v_add_u32 v{vT+8+j}, {WINS[2]}, v{vT+j}
        """
    rest_setup += f"""
    v_and_b32 v{vt+2}, 15, v{vL}
    v_lshrrev_b32 v{vt+3}, 1, v{vt+2}
    v_lshlrev_b32 v{vt+2}, 7, v{vt+2}
    v_lshrrev_b32 v{vt+4}, 4, v{vL}
    v_xor_b32 v{vt+3}, v{vt+3}, v{vt+4}
    v_lshlrev_b32 v{vt+3}, 4, v{vt+3}
    v_add_u32 v{vt+2}, v{vt+2}, v{vt+3}
    v_add_u32 v{vXr}, s{sXb}, v{vt+2}
    v_xor_b32 v{vXr+1}, 64, v{vXr}
    v_add_u32 v{vT2}, 65536, v{vXr}
    v_add_u32 v{vT2+1}, 65536, v{vXr+1}
    v_lshlrev_b32 v{vt+2}, 4, v{vL}
    s_lshl_b32 s{sT0}, s{sMT}, 14
    s_lshl_b32 s{sSo}, s{sW}, 12
    s_add_u32 s{sT0}, s{sT0}, s{sSo}
    s_lshl_b32 s{sSo}, s{sSwap}, 11
    s_add_u32 s3, s{sT0}, s{sSo}
    v_add_u32 v{vS01}, s3, v{vt+2}
    s_xor_b32 s{sSo}, s{sSo}, 2048
    s_add_u32 s{sSo}, s{sT0}, s{sSo}
    v_add_u32 v{vS23}, s{sSo}, v{vt+2}
    s_lshl_b32 s{sHS}, s{sLC0}, 18
    s_add_u32 s{sHS}, s{sHS}, {H_OFF}
    s_add_u32 s{sHS+1}, s{sHS}, {1<<17}
    s_add_u32 s{sHS+2}, s{sHS}, {2<<17}
    s_add_u32 s{sHS+3}, s{sHS}, {3<<17}
    s_lshl_b32 s{sHS2}, s{sLC2}, 1
    s_add_u32 s{sHS2}, s{sHS2}, s{sHalf}
    s_lshl_b32 s{sHS2}, s{sHS2}, 17
    s_add_u32 s{sHS2}, s{sHS2}, {H_OFF}
    """
    late_setup = f"""
    v_lshrrev_b32 v{vt+2}, 4, v{vL}
    v_lshlrev_b32 v{vt+2}, 9, v{vt+2}
    v_bfe_u32 v{vt+3}, v{vL}, 2, 2
    v_lshlrev_b32 v{vt+3}, 6, v{vt+3}
    v_add_u32 v{vt+2}, v{vt+2}, v{vt+3}
    v_and_b32 v{vt+3}, 3, v{vL}
    v_lshlrev_b32 v{vt+3}, 3, v{vt+3}
    v_add_u32 v{vt+2}, v{vt+2}, v{vt+3}
    v_bfe_u32 v{vt+3}, v{vL}, 4, 1
    v_lshlrev_b32 v{vt+3}, 5, v{vt+3}
    v_add_u32 v{vT2}, v{vt+2}, v{vt+3}
    v_xor_b32 v{vt+3}, 32, v{vt+3}
    v_add_u32 v{vT2+1}, v{vt+2}, v{vt+3}
    v_add_u32 v{vT2+2}, {WINS[1]}, v{vT2}
    v_add_u32 v{vT2+3}, {WINS[1]}, v{vT2+1}
    v_add_u32 v{vT2+4}, {WINS[2]}, v{vT2}
    v_add_u32 v{vT2+5}, {WINS[2]}, v{vT2+1}
    """
    def lines(txt):
        L = [l.strip() for l in txt.strip().split("\n") if l.strip()]
        out = []; k = 0
        while k < len(L):
            g = [L[k]]; k += 1
            if g[0].startswith(("s_cmp", "s_bitcmp")):
                assert L[k].startswith("s_cselect"), L[k]
                while k < len(L) and L[k].startswith("s_cselect"): g.append(L[k]); k += 1
            out.append(lambda g=g: S("\n".join(g)))
        return out
    def run(ops):
        for f in ops: f()
    stages = []
    for k in range(9): stages.append((0, [2*k, 2*k+1], (k % 4)*16384, 2))
    ring1 = [65536 + 24576*(k % 4) for k in range(9)]
    for k in range(6): stages.append((1, [3*k, 3*k+1, 3*k+2], ring1[k], 3))
    for k in range(3): stages.append((2, list(range(6*k, 6*k+6)), ring1[6+k], 3))
    NST = len(stages)
    blocks = []; first = {}; last = {}
    for s, (p, kl, base, nb) in enumerate(stages):
        per = len(kl)//nb
        first[s] = len(blocks)
        for b in range(nb): blocks.append((p, kl[b*per:(b+1)*per], s, b))
        last[s] = len(blocks) - 1
    NB = len(blocks)
    def ssize(s): return len(stages[s][1]) * (8192 if stages[s][0] < 2 else 4096)
    avail = {}
    for s in range(NST):
        lo, hi = stages[s][2], stages[s][2] + ssize(s)
        e = -1
        for u in range(s):
            if stages[u][2] < hi and lo < stages[u][2] + ssize(u): e = max(e, last[u])
        for g in range(9):
            xl = XST + (g % 3)*32768
            if xl < hi and lo < xl + 32768: e = max(e, 2*g)
        avail[s] = e
    def lds_off(s, kidx): return stages[s][2] + kidx*(8192 if stages[s][0] < 2 else 4096)
    def dma_ops(s):
        p, kl = stages[s][:2]
        ops = []
        for kidx, ks in enumerate(kl):
            o = lds_off(s, kidx)
            if p < 2:
                ops.append(lambda o=o: S(f"s_add_u32 m0, s{sW2k}, {o}"))
                ops.append(lambda ks=ks: S(f"s_add_u32 s{sSo}, s{sB0+p}, {ks*32*9216}"))
                ops.append(lambda: S.vmem(f"buffer_load_dwordx4 v{vW}, s[{SWG}:{SWG+3}], s{sSo} offen{DNT} lds", ("W", s)))
                ops.append(lambda: S.vmem(f"buffer_load_dwordx4 v{vW}, s[{SWU}:{SWU+3}], s{sSo} offen offset:1024{DNT} lds", ("W", s)))
            else:
                ops.append(lambda o=o: S(f"s_add_u32 m0, s{sW1k}, {o}"))
                ops.append(lambda ks=ks: S(f"s_add_u32 s{sSo}, s{sB2}, {ks*32*9216}"))
                ops.append(lambda: S.vmem(f"buffer_load_dwordx4 v{vW2}, s[{SW2}:{SW2+3}], s{sSo} offen{DNT} lds", ("W", s)))
        return ops
    def xload_ops(g):
        ops = []
        if g >= 3: ops.append(lambda: S.wait_ds({("x", 2*(g-3)+kk, rt) for kk in range(2) for rt in range(4)}))
        for h in range(2):
            ops.append(lambda h=h: S(f"s_add_u32 m0, s{sXb}, {(g % 3)*32768 + h*4096}"))
            ops.append(lambda h=h: S(f"s_add_u32 s{sSo}, s{sX0+h}, {g*128}"))
            for b in range(4):
                ops.append(lambda b=b: S.vmem(f"buffer_load_dwordx4 v{vX+b}, s[{SX}:{SX+3}], s{sSo} offen offset:{b*1024} lds", ("X", g)))
        return ops
    def xr_ops(g):
        o = (g % 3)*32768
        br = vXr
        if o >= 65536: o -= 65536; br = vT2
        return [lambda kk=kk, rt=rt: S.lds(f"ds_read_b128 {xreg(2*g+kk, rt)}, v{br+kk} offset:{o + rt*2048}", ("x", 2*g+kk, rt)) for kk in range(2) for rt in range(4)]
    cur_tr = [0]
    def tr(r, basereg, nlo, off):
        tag = ("A", r & ~3, cur_tr[0])
        w = 2 if off >= WINS[2] else (1 if off >= WINS[1] else 0)
        S.lds(f"ds_read_b64_tr_b16 v[{r}:{r+1}], v{basereg+nlo*w} offset:{off-WINS[w]}", tag)
    def tr_ops(bi):
        p, kl, s, b = blocks[bi]
        buf = AF + (bi % 2)*32
        ops = []
        if p < 2:
            base = lds_off(s, b)
            for j in range(4):
                for mat in range(2):
                    r = buf + (j*2+mat)*4
                    ops.append(lambda r=r, j=j, o=base+mat*1024: tr(r, vT+j, 4, o))
                    ops.append(lambda r=r, j=j, o=base+mat*1024+512: tr(r+2, vT+j, 4, o))
        else:
            for kk in range(2):
                base = lds_off(s, 2*b+kk)
                for j in range(2):
                    for mat in range(2):
                        r = buf + (kk*4+j*2+mat)*4
                        ops.append(lambda r=r, j=j, o=base+mat*2048: tr(r, vT2+j, 2, o))
                        ops.append(lambda r=r, j=j, o=base+mat*2048+256: tr(r+2, vT2+j, 2, o))
        return ops
    def mfma_list(bi):
        p, kl, s, b = blocks[bi]
        buf = AF + (bi % 2)*32
        L = []
        nj = 4 if p < 2 else 2
        nrt = 4 if p < 2 else 2
        for kk, ks in enumerate(kl):
            order = []
            if ks in (0, 17):
                for t in range(nj//2):
                    for rt in range(nrt):
                        for jj in range(2):
                            for mat in range(2): order.append((2*t+jj, mat, rt))
            else:
                for j in range(nj):
                    for mat in range(2):
                        for rt in range(nrt): order.append((j, mat, rt))
            for n, (j, mat, rt) in enumerate(order):
                d = acc(mat, j, rt); A = buf + (kk*4 + j*2+mat)*4
                c = "0" if ks == 0 else f"v[{d}:{d+3}]"
                L.append((f"v_mfma_f32_16x16x32_bf16 v[{d}:{d+3}], v[{A}:{A+3}], {xreg(ks,rt)}, {c}", (j//2, rt), ks, n, {("A", A, bi), ("x", ks, rt)}))
        return L
    def epi_ops(p, t, rt):
        ops = []
        g0, u0, g1, u1 = acc(0,2*t,rt), acc(1,2*t,rt), acc(0,2*t+1,rt), acc(1,2*t+1,rt)
        for r in range(4): ops.append(lambda r=r: S(f"v_mul_f32 v{g0+r}, v{g0+r}, v{u0+r}"))
        for r in range(4): ops.append(lambda r=r: S(f"v_mul_f32 v{g1+r}, v{g1+r}, v{u1+r}"))
        ops.append(lambda: S(f"v_cvt_pk_bf16_f32 v{u0}, v{g0}, v{g0+1}"))
        ops.append(lambda: S(f"v_cvt_pk_bf16_f32 v{u0+1}, v{g0+2}, v{g0+3}"))
        ops.append(lambda: S(f"v_cvt_pk_bf16_f32 v{u0+2}, v{g1}, v{g1+1}"))
        ops.append(lambda: S(f"v_cvt_pk_bf16_f32 v{u0+3}, v{g1+2}, v{g1+3}"))
        def st():
            so = f"s{sHS+2*p+t}" if p < 2 else f"s{sHS2}"
            vs = vS01 if rt < 2 else vS23
            S.vmem(f"buffer_store_dwordx4 v[{u0}:{u0+3}], v{vs}, s[{SWS}:{SWS+3}], {so} offen offset:{(rt&1)*1024} sc1", ("S", p))
        ops.append(st)
        return ops
    run(dma_ops(0)); run(xload_ops(0))
    S(f"""
    s_getpc_b64 s[{sSv}:{sSv+1}]
    {name}_pc:
    v_lshlrev_b32 v16, 7, v0
    """)
    vPF = vT2 + 2
    for k in range(geto("ncp", 3)):
        S(f"v_add_u32 v17, {32768*k}, v16")
        S(f"v_min_u32 v17, {name}_end-{name}_pc, v17")
        S.vmem(f"global_load_dword v{vPF}, v17, s[{sSv}:{sSv+1}]", "pf")
    run(dma_ops(1)); run(xload_ops(1))
    S(rest_setup)
    run(dma_ops(2))
    NXT = geto("nxt", 4)
    if NXT:
        S(f"""
        v_lshrrev_b32 v16, 2, v0
        v_mul_u32_u24 v16, 1152, v16
        v_and_b32 v17, 3, v0
        v_lshl_add_u32 v16, v17, 7, v16
        s_lshl_b32 s{sT0}, s{sJ}, 6
        s_mul_i32 s{sT0}, s{sT0}, 1152
        """)
        S.vmem(f"buffer_load_dword v{vPF}, v16, s[{SX}:{SX+3}], s{sT0} offen offset:256", "pf")
        if NXT > 4: S.vmem(f"buffer_load_dword v{vPF}, v16, s[{SX}:{SX+3}], s{sT0} offen offset:640", "pf")
    NWT = geto("nwt", 4)
    if NWT:
        S(f"""
        v_min_u32 v16, {NWT*8-1}, v0
        v_mul_u32_u24 v16, 9216, v16
        s_mul_i32 s{sT0}, s{sMT}, {NWT*8*9216}
        s_add_u32 s{sT0}, s{sT0}, s{sB0}
        s_add_u32 s{sT0}, s{sT0}, {192*9216}
        """)
        S.vmem(f"buffer_load_dword v{vPF}, v16, s[{SWG}:{SWG+3}], s{sT0} offen{DNT}", "pf")
        S.vmem(f"buffer_load_dword v{vPF}, v16, s[{SWU}:{SWU+3}], s{sT0} offen offset:1024{DNT}", "pf")
    ncom = len(S.vm)
    tstamp()
    a(f"""
    s_cmp_eq_u32 s{sW}, 3
    s_cbranch_scc1 {name}_w3
    s_mul_i32 s{sT1}, s{sW}, {SCR_SIZE}
    s_add_u32 s{sT1}, s{sT1}, {XST + 65536}
    s_lshl_b32 s{sT2}, s{sW}, 8
    s_add_u32 s{sT2}, s{sT2}, s2
    s_mul_i32 s{sT2}, s{sT2}, {KX_PITCH}
    s_add_u32 s{sT2}, s{sT2}, {KX_OFF + 128}
    """)
    R = emit_kgen2_pre(a, vL, 16, sT1)
    a(f"""
    v_mov_b32 v{R['tmp']}, 0
    v_mov_b32 v{R['tmp']+1}, 0
    s_sub_u32 s{sT1}, s{sT2}, 8
    buffer_store_dwordx2 v[{R['tmp']}:{R['tmp']+1}], off, s[{SWS}:{SWS+3}], s{sT1}
    s_waitcnt vmcnt({ncom+1})
    """)
    k0 = nst[0]
    tstamp()
    top = emit_kgen2(a, R, 8, 0, SWS, sT2, sMask)
    assert top <= V, top
    a(f"s_branch {name}_join")
    a(f"{name}_w3:")
    a(f"""
    v_lshrrev_b32 v2, 4, v{vL}
    v_and_b32 v3, 15, v{vL}
    v_lshlrev_b32 v4, 8, v2
    v_lshl_add_u32 v4, v3, 3, v4
    v_lshlrev_b32 v2, 4, v2
    v_lshl_add_u32 v3, v3, 12, v2
    s_lshl_b32 s{sT1}, s{sT4}, 16
    s_lshl_b32 s{sT2}, s{sT5}, 9
    s_add_u32 s{sT1}, s{sT1}, s{sT2}
    s_add_u32 s{sT1}, s{sT1}, {XT_OFF}
    v_mov_b32 v8, 0
    v_mov_b32 v9, 0
    v_mov_b32 v10, 0
    v_mov_b32 v11, 0
    s_lshl_b32 s{sT2}, s2, 7
    s_add_u32 s{sT2}, s{sT2}, {FLG_OFF}
    buffer_store_dwordx4 v[8:11], off, s[{SWS}:{SWS+3}], s{sT2} sc1
    s_waitcnt vmcnt({min(63, ncom+1+18)})
    """)
    nst[0] = k0
    tstamp()
    def xt_out(base):
        for k in range(8):
            for h in range(2):
                r = 12 + 4*k + 2*h
                a(f"ds_read_b64_tr_b16 v[{r}:{r+1}], v4 offset:{base + k*1024 + h*128}")
        for k in range(8):
            a(f"s_waitcnt lgkmcnt({14-2*k})")
            a(f"buffer_store_dwordx4 v[{12+4*k}:{15+4*k}], v3, s[{SWS}:{SWS+3}], s{sT1} offen offset:{k*64} sc1")
    xt_out(XTS)
    a(f"""
    s_waitcnt vmcnt({ncom+1+8})
    s_cmp_ge_u32 s{sT4}, 4
    s_cbranch_scc1 {name}_w3g
    s_add_u32 s{sT1}, s{sT1}, {32*65536}
    """)
    xt_out(XTS + 8192)
    a(f"{name}_w3g:")
    gt = 120; gacc = gt + 8
    a(f"v_mov_b32 v{gacc}, 0")
    a(f"v_mov_b32 v{gacc+1}, 0")
    for k in range(36):
        t = gt + 4*(k & 1)
        a(f"""
        v_lshlrev_b32 v{t}, 16, v{GX+k}
        v_and_b32 v{t+1}, s{sMask}, v{GX+k}
        v_lshlrev_b32 v{t+2}, 16, v{GW+k}
        v_and_b32 v{t+3}, s{sMask}, v{GW+k}
        v_pk_mul_f32 v[{t}:{t+1}], v[{t}:{t+1}], v[{t+2}:{t+3}]
        v_cvt_pk_bf16_f32 v{t}, v{t}, v{t+1}
        v_dot2_f32_bf16 v{gacc+(k&1)}, v{t}, s{sOnes}, v{gacc+(k&1)}
        """)
    a(f"""
    s_nop 2
    v_add_f32 v{gacc}, v{gacc}, v{gacc+1}
    s_nop 1
    v_add_f32_dpp v{gacc}, v{gacc}, v{gacc} quad_perm:[1,0,3,2] row_mask:0xf bank_mask:0xf
    s_nop 1
    v_add_f32_dpp v{gacc}, v{gacc}, v{gacc} quad_perm:[2,3,0,1] row_mask:0xf bank_mask:0xf
    s_nop 1
    v_add_f32_dpp v{gacc}, v{gacc}, v{gacc} row_half_mirror row_mask:0xf bank_mask:0xf
    v_cvt_pk_bf16_f32 v{gacc}, v{gacc}, v{gacc}
    v_lshlrev_b32 v{gacc}, 16, v{gacc}
    v_mul_f32 v{gacc}, {-LOG2E}, v{gacc}
    v_exp_f32 v{gacc}, v{gacc}
    s_nop 0
    v_add_f32 v{gacc}, 1.0, v{gacc}
    v_rcp_f32 v{gacc}, v{gacc}
    s_nop 0
    v_cvt_pk_bf16_f32 v{gacc}, v{gacc}, v{gacc}
    v_lshlrev_b32 v{gacc}, 16, v{gacc}
    v_lshrrev_b32 v{gt}, 3, v{vL}
    v_lshlrev_b32 v{gt}, 2, v{gt}
    s_lshl_b32 s{sT1}, s2, 5
    s_add_u32 s{sT1}, s{sT1}, {G_OFF}
    buffer_store_dword v{gacc}, v{gt}, s[{SWS}:{SWS+3}], s{sT1} offen sc1
    v_mov_b32 v2, 1
    s_mov_b64 exec, 1
    s_waitcnt vmcnt(0)
    buffer_atomic_add v2, off, s[{SDB}:{SDB+3}], 0 sc1
    s_mov_b64 exec, -1
    """)
    a(f"{name}_join:")
    tstamp()
    S.wait_vm({("X",0)})
    run(xr_ops(0))
    S("s_barrier")
    tstamp()
    cur_tr[0] = 0
    run(tr_ops(0))

    sFl, sPin, sP8in, sK = 4, 5, 6, 7
    sHb, sWd, sA, sAc = 18, 19, 32, 33
    sB2_, sC_, sBCs, sB1g = 54, 55, 58, 59
    sB1s, sW4k, sAo = 68, 69, 70
    sAx, sTile, sPo, sP8o = 78, 79, 80, 81
    SOUT = SWU
    def flag_store(vtmp, val, dw):
        S(f"v_mov_b32 v{vtmp}, {val}")
        S.vmem(f"buffer_store_dword v{vtmp}, off, s[{SWS}:{SWS+3}], s{sFl} offset:{4*dw} sc1", "flag")
    npoll = [0]
    def poll_ops(loads, cmps):
        npoll[0] += 1; k = npoll[0]
        issue = [(lambda l=l: S.vmem(l, ("poll", k))) for l in loads]
        chk = [lambda: (S.wait_vm({("poll", k)}), S(cmps[0]))] + [(lambda c=c: S(c)) for c in cmps[1:]]
        def fin():
            S("s_cmp_eq_u64 vcc, exec")
            S(f"s_cbranch_scc0 {name}_slow{k}")
            S(f"{name}_back{k}:")
        chk.append(fin)
        nl = "\n"
        slow.append(f"""
        {name}_slow{k}:
        s_mov_b32 s{sSv}, {geto('spin', SPIN)}
        {name}_slowl{k}:
        {nl.join(loads)}
        s_sub_u32 s{sSv}, s{sSv}, 1
        s_cmp_eq_u32 s{sSv}, 0
        s_waitcnt vmcnt(0)
        s_cbranch_scc1 {name}_back{k}
        {nl.join(cmps)}
        s_cmp_eq_u64 vcc, exec
        s_cbranch_scc0 {name}_slowl{k}
        s_branch {name}_back{k}
        """)
        return issue, chk

    ksAg = [(0,1,4,5),(8,9,12,13),(18,19,22,23),(26,27,30,31)]
    ksBg = [(2,3,6,7),(10,11,14,15),(20,21,24,25),(28,29,32,33)]
    ksA = [k for g in ksAg for k in g]; ksB = [k for g in ksBg for k in g]; ksC = [16, 17, 34, 35]
    hperm = [12, 13, 14, 15] + list(range(2, 12)) + [0, 1]
    def hreg(ks, rt):
        if ks in ksA: r = 16*hperm[ksA.index(ks)] + 8 + 4*rt; return f"a[{r}:{r+3}]"
        if ks in ksB: r = 16*ksB.index(ks) + 4*rt; return f"a[{r}:{r+3}]"
        r = XV + 8*ksC.index(ks) + 4*rt; return f"v[{r}:{r+3}]"
    cur_blk = [0]
    def h_ops(ks):
        def first():
            if ks in ksA: assert cur_blk[0] > 18 + hperm[ksA.index(ks)], (ks, cur_blk)
            S(f"s_add_u32 s{sT0}, s{sHb}, {ks*131072}")
        return [first,
                lambda: S.vmem(f"buffer_load_dwordx4 {hreg(ks,0)}, v{vS01}, s[{SWS}:{SWS+3}], s{sT0} offen sc1", ("H", ks)),
                lambda: S.vmem(f"buffer_load_dwordx4 {hreg(ks,1)}, v{vS01}, s[{SWS}:{SWS+3}], s{sT0} offen offset:1024 sc1", ("H", ks))]
    def kdma_ops(ch):
        ops = [lambda: S(f"s_mul_i32 s{sT0}, s{sW}, {CP_PITCH}"),
               lambda: S(f"s_add_u32 m0, s{sT0}, {CB[ch] + 32}"),
               lambda: S(f"s_add_u32 s{sSo}, s{sK}, {ch*256*KX_PITCH}")]
        for p in range(4):
            ops.append(lambda p=p: S.vmem(f"buffer_load_dwordx4 v{vS01}, s[{SWS}:{SWS+3}], s{sSo} offen offset:{p*1024} sc1 lds", ("K", ch)))
        return ops

    UR = [8, 12, 24]
    FR = vX
    cU = vXr
    cZ = vXr + 1
    cA, cB_, cA2, cBh = FR, FR+1, FR+2, FR+3
    cBl, vUe, vAx, vXw = cZ, vW, cU, vW2
    vPH = vt + 2
    vXp, vXe, vAo = vS23, vt+3, vt+4
    UX, vPr = 204, 207
    CACC = [64 + 4*k for k in range(8)]
    KEEP = CACC[:4]
    X0, X1 = 96, 100
    UE = 104
    UD = 96
    gA, gB1, gBC = 112, 116, 120
    gT1 = [124, 125, 126]
    vP8 = 127
    KS = 36864
    groups = []
    def G(units, dma): groups.append((units, dma))
    A4 = [gA+n for n in range(4)]; B14 = [gB1+n for n in range(4)]; BC4 = [gBC+n for n in range(4)]
    for g in ksAg: G([("A", [k]) for k in g], (sW4k, sA, g[0], A4))
    G([("B1", list(g)) for g in ksAg], (sW4k, sB1g, 0, B14))
    for b in (0, 18): G([("B2", [b+4*n, b+4*n+1]) for n in range(4)], (sW4k, sB2_, b, BC4))
    for g in ksBg: G([("A", [k]) for k in g], (sW4k, sA, g[0], A4))
    G([("A", [k]) for k in ksC], (sW4k, sAc, 16, A4))
    G([("B1", list(g)) for g in ksBg], (sW4k, sB1g, 2, B14))
    G([("B1", ksC)], (sW1k, sB1s, 16, B14[:1]))
    for b in (2, 20): G([("B2", [b+4*n, b+4*n+1]) for n in range(4)], (sW4k, sB2_, b, BC4))
    G([("B2", [16, 17]), ("B2", [34, 35]), ("C", [16, 17]), ("C", [34, 35])], (sW4k, sBCs, 16, BC4))
    for b in (0, 18, 2, 20): G([("C", [b+4*n, b+4*n+1]) for n in range(4)], (sW4k, sC_, b, BC4))
    NG = len(groups)
    RG = [7, 8, 9, 4, 0, 1, 2, 3, 5, 6]
    def gbase(n): return RG[n % 10]*16384
    units = []; gfirst = []; glast = []
    for n, (ul, _) in enumerate(groups):
        gfirst.append(len(units))
        for k, (ty, kl) in enumerate(ul): units.append((ty, kl, n, k))
        glast.append(len(units) - 1)
    NU = len(units); assert NU == 81
    gstage = [min(n // 2, 9) for n in range(NG)]
    SWD = SWG
    def wd_dma(n):
        sm, sb, ks0, regs = groups[n][1]
        ops = [lambda: S(f"s_add_u32 m0, s{sm}, {gbase(n)}"), lambda: S(f"s_add_u32 s{sSo}, s{sb}, {ks0*KS}")]
        for k, vg in enumerate(regs):
            ops.append(lambda vg=vg, k=k: S.vmem(f"buffer_load_dwordx4 v{vg}, s[{SWD}:{SWD+3}], s{sSo} offen offset:{k*1024} lds", ("D", n)))
        return ops
    setup_s = f"""
    s_lshl_b32 s{sFl}, s2, 7
    s_add_u32 s{sFl}, s{sFl}, {FLG_OFF}
    s_and_b32 s{sT1}, s{sG}, 1
    s_lshl_b32 s{sTile}, s{sMT}, 1
    s_add_u32 s{sTile}, s{sTile}, s{sT1}
    s_lshl_b32 s{sTile}, s{sTile}, 2
    s_add_u32 s{sTile}, s{sTile}, s{sI}
    s_lshl_b32 s{sTile}, s{sTile}, 2          ; tile*4
    s_add_u32 s{sT2}, s{sTile}, s{sGam}
    s_mul_i32 s{sPin}, s{sT2}, 24576
    s_add_u32 s{sPin}, s{sPin}, s{sW2k}
    s_add_u32 s{sPin}, s{sPin}, {P_OFF}
    s_sub_u32 s{sPin}, s{sPin}, s3
    s_lshl_b32 s{sP8in}, s{sT2}, 12
    s_add_u32 s{sP8in}, s{sP8in}, s{sW1k}
    s_add_u32 s{sP8in}, s{sP8in}, {P8_OFF}
    s_sub_u32 s{sP8in}, s{sP8in}, s3
    s_mul_i32 s{sK}, s2, {KX_PITCH}
    s_add_u32 s{sK}, s{sK}, {KX_OFF + 128}
    s_sub_u32 s{sK}, s{sK}, s3
    s_lshl_b32 s{sT2}, s{sW}, 1
    s_sub_u32 s{sK}, s{sK}, s{sT2}
    s_mul_i32 s{sHb}, s{sGam}, {36*131072}
    s_lshl_b32 s{sT2}, s{sMT}, 14
    s_add_u32 s{sHb}, s{sHb}, s{sT2}
    s_lshl_b32 s{sT2}, s{sT1}, 13
    s_add_u32 s{sHb}, s{sHb}, s{sT2}
    s_add_u32 s{sHb}, s{sHb}, s{sW2k}
    s_add_u32 s{sHb}, s{sHb}, {H_OFF}
    s_sub_u32 s{sHb}, s{sHb}, s3
    s_mul_i32 s{sWd}, s{sGam}, {1152*1152}
    s_lshr_b32 s{sT2}, s{sW}, 1
    s_and_b32 s{sT4}, s{sW}, 1
    s_mul_i32 s{sA}, s{sT2}, {4*KS}
    s_add_u32 s{sA}, s{sA}, s{sWd}
    s_mul_i32 s{sAc}, s{sT2}, {18*KS}
    s_add_u32 s{sAc}, s{sAc}, s{sWd}
    s_mul_i32 s{sB1s}, s{sT4}, {KS}
    s_add_u32 s{sB1s}, s{sB1s}, s{sAc}
    s_mul_i32 s{sB1g}, s{sT4}, {8*KS}
    s_add_u32 s{sB1g}, s{sB1g}, s{sAc}
    s_mul_i32 s{sC_}, s{sW}, {4*KS}
    s_add_u32 s{sC_}, s{sC_}, s{sWd}
    s_add_u32 s{sT3}, s{sGam}, 3
    s_and_b32 s{sT3}, s{sT3}, 3
    s_lshl_b32 s{sT3}, s{sT3}, 6
    s_add_u32 s{sB2_}, s{sC_}, s{sT3}
    s_lshl_b32 s{sT5}, s{sGam}, 6
    s_add_u32 s{sC_}, s{sC_}, s{sT5}
    s_cmp_lt_u32 s{sW}, 2
    s_cselect_b32 s{sT3}, s{sT3}, s{sT5}
    s_mul_i32 s{sBCs}, s{sT4}, {18*KS}
    s_add_u32 s{sBCs}, s{sBCs}, s{sWd}
    s_add_u32 s{sBCs}, s{sBCs}, s{sT3}
    s_lshl_b32 s{sW4k}, s{sW}, 12
    s_lshl_b32 s{sAo}, s{sT2}, 8
    s_add_u32 s{sAo}, s{sAo}, s2
    s_lshl_b32 s{sAo}, s{sAo}, 12
    s_and_b32 s{sT3}, s{sW}, 1
    s_lshl_b32 s{sT3}, s{sT3}, 11
    s_add_u32 s{sAo}, s{sAo}, s{sT3}
    s_add_u32 s{sAo}, s{sAo}, {AT_OFF}
    s_and_b32 s{sAx}, s2, 63
    s_lshl_b32 s{sAx}, s{sAx}, 12
    s_add_u32 s{sAx}, s{sAx}, {AT_OFF + 512*4096}
    s_mul_i32 s{sPo}, s{sTile}, 24576
    s_add_u32 s{sPo}, s{sPo}, s{sW2k}
    s_add_u32 s{sPo}, s{sPo}, {P_OFF}
    s_sub_u32 s{sPo}, s{sPo}, s3
    s_lshl_b32 s{sP8o}, s{sTile}, 12
    s_add_u32 s{sP8o}, s{sP8o}, s{sW1k}
    s_lshl_b32 s{sT3}, s{sGam}, 8
    s_add_u32 s{sP8o}, s{sP8o}, s{sT3}
    s_add_u32 s{sP8o}, s{sP8o}, {P8_OFF}
    s_and_b32 s{sT1}, s2, 1
    s_lshl_b32 s{sT1}, s{sT1}, 4
    s_xor_b32 s{sT1}, s{sT1}, 16
    s_lshl_b32 s{sDm}, s{sDm}, s{sT1}
    s_and_b32 s{sDm}, s{sDm}, s{sMask}
    s_lshl_b32 s{sDx}, s{sDx}, s{sT1}
    s_and_b32 s{sDx}, s{sDx}, s{sMask}
    """
    pads = lines(f"""
    v_mov_b32 v{FR}, 0
    v_mov_b32 v{FR+1}, 0
    v_mov_b32 v{FR+2}, 0
    v_mov_b32 v{FR+3}, 0
    v_lshlrev_b32 v{cU}, 4, v{vL}
    s_add_u32 s{sT1}, s{sW1k}, {CB[2] + UBO}
    s_cmp_eq_u32 s{sW}, 2
    s_cselect_b32 s{sT1}, {CB[0] + UBO}, s{sT1}
    s_cmp_eq_u32 s{sW}, 3
    s_cselect_b32 s{sT1}, {CB[1] + UBO}, s{sT1}
    v_add_u32 v{cZ}, s{sT1}, v{cU}
    """) + [lambda: S.lds(f"ds_write_b128 v{cZ}, v[{FR}:{FR+3}]")] + lines(f"""
    v_min_u32 v{vt+2}, 23, v{vL}
    v_lshrrev_b32 v{cZ}, 3, v{vt+2}
    v_mul_u32_u24 v{cZ}, {CB[1]}, v{cZ}
    v_bfe_u32 v{vt+3}, v{vt+2}, 1, 2
    v_mul_u32_u24 v{vt+3}, {CP_PITCH}, v{vt+3}
    v_add_u32 v{cZ}, v{cZ}, v{vt+3}
    v_and_b32 v{vt+3}, 1, v{vt+2}
    v_lshl_add_u32 v{cZ}, v{vt+3}, 4, v{cZ}
    v_add_u32 v{cU}, s{sW1k}, v{cU}
    """) + [lambda: S.lds(f"ds_write_b128 v{cZ}, v[{FR}:{FR+3}]", "pad")]
    clr = [lambda: (S.wait_ds({"pad"}), S(f"v_mov_b32 v{FR}, -1"))] + lines(f"""
    v_mov_b32 v{FR+1}, -1
    v_mov_b32 v{FR+2}, -1
    v_mov_b32 v{FR+3}, -1
    """)
    for d in range(3):
        clr.append(lambda d=d: S(f"s_add_u32 s{sSo}, s{sPin}, {d*8192}"))
        for rt in range(2):
            clr.append(lambda rt=rt: S.vmem(f"buffer_store_dwordx4 v[{FR}:{FR+3}], v{vS01}, s[{SWS}:{SWS+3}], s{sSo} offen offset:{rt*1024} sc1", "CL"))
    clr.append(lambda: S.vmem(f"buffer_store_dwordx4 v[{FR}:{FR+3}], v{vS01}, s[{SWS}:{SWS+3}], s{sP8in} offen sc1", "CL"))
    t0, t1 = vt+3, vt+4
    setup_conv = f"""
    v_bfe_u32 v{t0}, v{vL}, 2, 2
    v_mul_u32_u24 v{t0}, {CP_PITCH}, v{t0}
    v_and_b32 v{t1}, 48, v{vL}
    v_sub_u32 v{t0}, v{t0}, v{t1}
    v_and_b32 v{cA}, 3, v{vL}
    v_lshl_add_u32 v{t0}, v{cA}, 3, v{t0}
    s_lshr_b32 s{sT1}, s{sW}, 1
    s_mul_i32 s{sT1}, s{sT1}, {CB[1]}
    s_and_b32 s{sT2}, s{sW}, 1
    s_lshl_b32 s{sT2}, s{sT2}, 8
    s_add_u32 s{sT3}, s{sT1}, s{sT2}
    s_add_u32 s{sT3}, s{sT3}, 56
    v_add_u32 v{cA}, s{sT3}, v{t0}
    s_lshl_b32 s{sT3}, s{sW}, 7
    s_add_u32 s{sT4}, s{sT3}, {CB[2] + 56}
    v_add_u32 v{cA2}, s{sT4}, v{t0}
    v_and_b32 v{t0}, 15, v{vL}
    v_lshlrev_b32 v{t0}, 5, v{t0}
    v_add_u32 v{cBl}, v{t0}, v{t1}
    s_sub_u32 s{sT4}, s{sT1}, s{sT2}
    s_add_u32 s{sT4}, s{sT4}, {UBO + 448 - 192}
    v_add_u32 v{cB_}, s{sT4}, v{cBl}
    s_lshr_b32 s{sB1}, s2, 6
    s_lshl_b32 s{sB1}, s{sB1}, 9              ; 512*qd
    s_sub_u32 s{sT4}, {UST[2] - 480 + 384}, s{sT3}
    s_sub_u32 s{sT3}, s{sT4}, s{sB1}
    v_add_u32 v{cBh}, s{sT3}, v{cBl}
    s_add_u32 s{sT3}, s{sT4}, s{sB1}
    s_sub_u32 s{sT3}, s{sT3}, 1536
    v_add_u32 v{cBl}, s{sT3}, v{cBl}
    v_lshrrev_b32 v{t1}, 1, v{t1}
    v_add_u32 v{t0}, v{t0}, v{t1}             ; (16n+4q)*2
    s_lshl_b32 s{sT2}, s{sT2}, 3
    s_add_u32 s{sT1}, s{sT1}, s{sT2}
    v_add_u32 v{vUe}, s{sT1}, v{t0}
    """
    setup_conv2 = f"""
    s_sub_u32 s{sT3}, 3584, s{sB1}
    s_bitcmp1_b32 s{sW}, 0
    s_cselect_b32 s{sT3}, s{sT3}, s{sB1}
    s_lshr_b32 s{sT1}, s{sW}, 1
    s_lshl_b32 s{sT2}, s{sT1}, 2
    s_add_u32 s{sT3}, s{sT3}, s{sT2}
    s_mul_i32 s{sT2}, s{sT1}, {CB[1]}
    s_sub_u32 s{sT3}, s{sT3}, s{sT2}
    s_and_b32 s{sT2}, s{sW}, 1
    s_lshl_b32 s{sT2}, s{sT2}, 11
    s_sub_u32 s{sT3}, s{sT3}, s{sT2}
    v_add_u32 v{vAx}, s{sT3}, v{vUe}
    s_mul_i32 s{sT2}, s{sW}, 6144
    s_add_u32 s{sT2}, s{sT2}, {SCX}
    s_sub_u32 s{sT2}, s{sT2}, s3
    v_add_u32 v{vXw}, s{sT2}, v{vS01}
    s_xor_b32 s{sT2}, s{sW}, 1
    s_mul_i32 s{sT2}, s{sT2}, 6144
    s_add_u32 s{sT2}, s{sT2}, {SCX}
    s_sub_u32 s{sB1}, s{sT2}, s3
    s_and_b32 s{sT2}, s{sW}, 1
    s_lshl_b32 s{sT2}, s{sT2}, 10
    s_lshl_b32 s{sT1}, s{sT1}, 3
    s_add_u32 s{sT2}, s{sT2}, s{sT1}
    s_add_u32 s{sT2}, s{sT2}, {SCX + 4096}
    s_sub_u32 s{sT2}, s{sT2}, s3
    v_add_u32 v{vXe}, s{sT2}, v{vS01}
    v_and_b32 v{vAo}, 15, v{vL}
    v_lshlrev_b32 v{vAo}, 5, v{vAo}
    s_mul_i32 s{sT1}, s{sW}, {8*1152}
    s_and_b32 s{sT1}, s{sT1}, {8*1152}
    """
    u0, u1, u2, u3, u4 = UE, UE+1, UE+2, UE+3, UE+4
    setup_gA = f"""
    v_add_u32 v{vXp}, s{sB1}, v{vS01}
    v_bfe_u32 v{u0}, v{vL}, 4, 1
    v_lshl_add_u32 v{vAo}, v{u0}, 9, v{vAo}
    v_lshlrev_b32 v{u1}, 1, v{u0}
    v_and_b32 v{u2}, 7, v{vL}
    v_xor_b32 v{u1}, v{u1}, v{u2}                ; c (q1 = 0)
    v_lshrrev_b32 v{u3}, 5, v{vL}
    v_lshl_add_u32 v{vAo}, v{u3}, 4, v{vAo}
    v_bfe_u32 v{u0}, v{vL}, 3, 2
    v_lshl_add_u32 v{u0}, v{u3}, 4, v{u0}
    v_mul_u32_u24 v{u0}, 1152, v{u0}
    v_and_b32 v{u2}, 3, v{u1}
    v_lshl_add_u32 v{u0}, v{u2}, 4, v{u0}
    v_add_u32 v{u0}, s{sB2}, v{u0}
    v_lshrrev_b32 v{u1}, 2, v{u1}
    v_add_u32 v{u2}, s{sT4}, v{u1}
    v_and_b32 v{u2}, 3, v{u2}
    v_lshl_add_u32 v{gA}, v{u2}, 6, v{u0}
    v_sub_u32 v{u2}, s{sT3}, v{u1}
    v_and_b32 v{u2}, 3, v{u2}
    v_lshl_add_u32 v{u2}, v{u2}, 6, v{u0}
    v_add_u32 v{gA+1}, {KS - 1024}, v{gA}
    v_add_u32 v{gA+2}, {4*1152 - 2048}, v{u2}
    v_add_u32 v{gA+3}, {KS + 4*1152 - 3072}, v{u2}
    """
    setup_gB = f"""
    v_lshrrev_b32 v{u0}, 1, v{vL}
    v_mul_u32_u24 v{u0}, 1152, v{u0}
    v_and_b32 v{u1}, 1, v{vL}
    v_lshl_add_u32 v{u0}, v{u1}, 4, v{u0}
    s_lshl_b32 s{sT3}, s{sI}, 5
    s_add_u32 s{sT3}, s{sT3}, 1024
    v_add_u32 v{gB1}, s{sT3}, v{u0}
    v_add_u32 v{gB1+1}, {KS - 1024}, v{gB1}
    v_add_u32 v{gB1+2}, {4*KS - 2048}, v{gB1}
    v_add_u32 v{gB1+3}, {5*KS - 3072}, v{gB1}
    v_bfe_u32 v{u0}, v{vL}, 2, 2
    v_lshl_add_u32 v{u0}, v{u3}, 2, v{u0}
    v_and_b32 v{u1}, 16, v{vL}
    v_add_u32 v{u0}, v{u0}, v{u1}
    v_mul_u32_u24 v{u0}, 1152, v{u0}
    v_lshlrev_b32 v{u1}, 1, v{u3}
    v_and_b32 v{u2}, 3, v{vL}
    v_xor_b32 v{u1}, v{u1}, v{u2}
    v_lshl_add_u32 v{u0}, v{u1}, 4, v{u0}
    s_lshl_b32 s{sT2}, s{sI}, 8
    v_add_u32 v{gBC}, s{sT2}, v{u0}
    v_add_u32 v{gBC+1}, {8*1152 - 1024}, v{gBC}
    v_add_u32 v{gBC+2}, {KS - 2048}, v{gBC}
    v_add_u32 v{gBC+3}, {KS + 8*1152 - 3072}, v{gBC}
    v_lshlrev_b32 v{gT1[0]}, 3, v{vL}
    v_add_u32 v{gT1[1]}, {WINS[1]}, v{gT1[0]}
    v_add_u32 v{gT1[2]}, {WINS[2]}, v{gT1[0]}
    v_lshrrev_b32 v{u0}, 4, v{vL}
    v_and_b32 v{u1}, 15, v{vL}
    v_lshlrev_b32 v{u1}, 4, v{u1}
    v_lshl_add_u32 v{vP8}, v{u0}, 12, v{u1}
    """
    inject = {}
    def inj(bi, ops): inject.setdefault(bi, []).extend(ops)
    forced = {}
    class Hold:
        def __init__(s, n): s.n = n
    injecta = {}
    def inja(bi, ops): injecta.setdefault(bi, []).extend(ops)
    pending_epi = []; vq = []; aq = []
    barx = {}
    inj(0, xload_ops(2) + dma_ops(3))
    inja(13, lines(setup_s))
    inja(18, pads + clr[:4] + [lambda: vq.extend(clr[4:] + kdma_ops(0) + kdma_ops(1) + kdma_ops(2))])
    c0_i, c0_c = poll_ops([f"buffer_load_dword v{vt+4}, off, s[{SDB}:{SDB+3}], 0 sc1"], [f"v_cmp_eq_u32 vcc, 0x100, v{vt+4}"])
    inja(21, c0_i)
    inja(22, lines(late_setup))
    inja(24, lines(f"""
    s_lshl_b32 s{sT1}, s2, 12
    s_add_u32 s{sT1}, s{sT1}, s{sW1k}
    s_add_u32 s{sT1}, s{sT1}, {XT_OFF}
    s_sub_u32 s{sT2}, s{sT1}, s3
    s_add_u32 s{sT3}, s{sT2}, {256*4096}
    s_and_b32 s{sT1}, s2, 63
    s_lshl_b32 s{sT1}, s{sT1}, 12
    s_add_u32 s{sT1}, s{sT1}, s{sW1k}
    s_add_u32 s{sT1}, s{sT1}, {XT_OFF + 512*4096}
    s_sub_u32 s{sT4}, s{sT1}, s3
    """))
    inja(25, c0_c + [(lambda k=k: S.vmem(f"buffer_load_dwordx4 a[{UR[k]}:{UR[k]+3}], v{vS01}, s[{SWS}:{SWS+3}], s{sT2+k} offen sc1", "U")) for k in range(3)])
    barx[26] = ({("S", 0)}, lambda: flag_store(vt+4, 1, 0))
    sFp = sB0
    inja(27, lines(f"""
    v_and_b32 v{vt+2}, 3, v{vL}
    v_lshlrev_b32 v{vt+3}, 8, v{vt+2}
    v_lshlrev_b32 v{vt+2}, 10, v{vt+2}
    v_bfe_u32 v{FR}, v{vL}, 2, 1
    v_lshl_add_u32 v{vt+2}, v{FR}, 7, v{vt+2}
    s_lshl_b32 s{sT1}, s{sGam}, 8
    v_add_u32 v{vt+2}, s{sT1}, v{vt+2}
    s_and_b32 s{sT1}, s{sG}, 1
    s_lshl_b32 s{sT1}, s{sT1}, 7
    s_lshl_b32 s{sT2}, s{sI}, 10
    s_add_u32 s{sT1}, s{sT1}, s{sT2}
    v_add_u32 v{vt+3}, s{sT1}, v{vt+3}
    v_and_b32 v{FR}, 8, v{vL}
    v_cmp_eq_u32 vcc, 0, v{FR}
    s_lshl_b32 s{sFp}, s{sMT}, 12
    s_add_u32 s{sFp}, s{sFp}, {FLG_OFF}
    v_cndmask_b32 v{vt+2}, v{vt+3}, v{vt+2}, vcc
    s_mov_b32 s{SOUT}, s{pOut}
    s_mov_b32 s{SOUT+1}, s{pOut+1}
    s_mov_b32 s{SOUT+2}, {2048*1152}
    s_mov_b32 s{SWD}, s{pWd}
    s_mov_b32 s{SWD+1}, s{pWd+1}
    s_mov_b32 s{SWD+2}, {4608*1152}
    """))
    wdt = lines(f"""
    s_mul_i32 s{sT1}, s{sJ}, {324*128}
    s_add_u32 s{sT1}, s{sT1}, s{sWd}
    v_lshlrev_b32 v{vt+3}, 3, v{cU}
    v_min_u32 v{vt+4}, {67*128}, v{vt+3}
    """) + [lambda: S.vmem(f"buffer_load_dword a{UR[2]+4}, v{vt+3}, s[{SWD}:{SWD+3}], s{sT1} offen", "pf"),
            lambda: S(f"s_add_u32 s{sT1}, s{sT1}, {256*128}"),
            lambda: S.vmem(f"buffer_load_dword a{UR[2]+4}, v{vt+4}, s[{SWD}:{SWD+3}], s{sT1} offen", "pf")]
    if "nowdt" not in O: inja(27, wdt)
    inja(28, lines(setup_conv))
    p1_i, p1_c = poll_ops([f"buffer_load_dword v{vt+3}, v{vt+2}, s[{SWS}:{SWS+3}], s{sFp} offen sc1"], [f"v_cmp_le_u32 vcc, 1, v{vt+3}"])
    P1C = geto("p1c", 31)
    inja(geto("p1i", 29), p1_i)
    barx[29] = ({("K", 2)}, None)
    inja(P1C, [(lambda k=k: (S.wait_vm({"U"}), S.lds(f"ds_write_b128 v{cU}, a[{UR[k]}:{UR[k]+3}] offset:{UST[k]}", "uw"))) for k in range(3)]
        + p1_c + [lambda: vq.extend([o for ks in ksA[4:16] + ksA[0:4] for o in h_ops(ks)])])
    def chk17(): assert sum(x == ("W", 17) for x in S.vm) == 6
    inja(33, [Hold(12), chk17] + lines(setup_conv2) + lines(f"""
    s_lshl_b32 s{sB2}, s{sI}, 8
    s_add_u32 s{sB2}, s{sB2}, s{sT1}
    s_add_u32 s{sT4}, s{sGam}, 1
    s_add_u32 s{sT3}, s{sGam}, 2
    """))
    sAi, sGi, sA8, sO0, sO1, sO8 = 60, 61, 64, 65, 28, 47
    sA8b, sFb, sP1, sP2, sPd = 29, 0, 1, 11, 44
    sCa, sCx, sAst = 8, 9, 10
    fs_s = f"""
    s_lshl_b32 s{sCa}, s{sI}, 7
    s_lshl_b32 s{sT2}, s{sGam}, 5
    s_add_u32 s{sCa}, s{sCa}, s{sT2}          ; cA
    s_sub_u32 s{sT3}, 7, s{sMT}
    s_min_u32 s{sT3}, s{sT3}, s{sMT}
    s_lshl_b32 s{sT3}, s{sT3}, 6
    s_lshl_b32 s{sT4}, s{sI}, 4
    s_lshl_b32 s{sT2}, s{sGam}, 2
    s_add_u32 s{sT4}, s{sT4}, s{sT2}          ; 16i+4g
    s_add_u32 s{sCx}, s{sT3}, s{sT4}
    s_lshr_b32 s{sT2}, s{sTile}, 4
    s_lshl_b32 s{sT2}, s{sT2}, 7
    s_lshl_b32 s{sT3}, s{sW}, 5
    s_add_u32 s{sT2}, s{sT2}, s{sT3}          ; r0
    s_lshl_b32 s{sAi}, s{sCa}, 12
    s_lshl_b32 s{sT3}, s{sT2}, 1
    s_add_u32 s{sAi}, s{sAi}, s{sT3}
    s_add_u32 s{sAi}, s{sAi}, {AT_OFF}
    s_lshl_b32 s{sA8}, s{sT4}, 12
    s_add_u32 s{sA8}, s{sA8}, s{sT3}
    s_add_u32 s{sA8}, s{sA8}, {AT_OFF + 512*4096}
    s_add_u32 s{sA8b}, s{sA8}, 4096
    s_lshl_b32 s{sGi}, s{sT2}, 2
    s_add_u32 s{sGi}, s{sGi}, {G_OFF}
    s_mul_i32 s{sO8}, s{sT2}, 1152
    s_lshl_b32 s{sT3}, s{sCa}, 1
    s_add_u32 s{sO0}, s{sO8}, s{sT3}
    s_add_u32 s{sO1}, s{sO0}, {16*1152}
    s_lshl_b32 s{sT3}, s{sT4}, 1
    s_add_u32 s{sO8}, s{sO8}, s{sT3}
    s_add_u32 s{sO8}, s{sO8}, 1024
    s_mov_b32 s{sFb}, {FLG_OFF}
    s_add_u32 s{sP1}, s{sPin}, 8192
    s_add_u32 s{sP2}, s{sPin}, 16384
    s_add_u32 s{sAst}, s{sW2k}, {ATS}
    """
    for d in range(3):
        r = sPd + d
        fs_s += f"""
        s_add_u32 s{r}, s{sGam}, {d+1}
        s_and_b32 s{r}, s{r}, 3
        s_mul_i32 s{r}, s{r}, 24576
        s_add_u32 s{r}, s{r}, s{sPo}
        s_add_u32 s{r}, s{r}, {d*8192}
        """
    inja(39, lines(setup_gA) + [lambda: vq.extend(wd_dma(0))])
    conv_vq = wd_dma(1) + wd_dma(2)
    inja(29, lines(fs_s))
    inja(41, lines(setup_gB))
    conv_aq = []

    def order36():
        L = []
        for k in range(8):
            L += [(k, d) for d in range(k+1) if k + d <= 7] + [(x, k) for x in range(k) if x + k <= 7]
        return L
    CM = []
    for sec in ("r0", "e0", "r1", "e1", "r2"):
        r = int(sec[1])
        if sec[0] == "r":
            seen = set()
            for (x, d) in order36():
                CM.append((CACC[x+d], ("A", r, x), ("B", r, d), r == 0 and (x+d) not in seen)); seen.add(x+d)
        else:
            for k in range(8):
                CM.append((X1, ("A2", r, k), ("Bh", r, k), r == 0 and k == 0))
                if k < 4: CM.append((X0, ("A2", r, k), ("Bl", r, k), r == 0 and k == 0))
    NC1 = len(CM)
    fuse = {}; luse = {}; forder = []
    for m, (_, fa, fb, _) in enumerate(CM):
        for f in (fa, fb):
            if f not in fuse: fuse[f] = m; forder.append(f)
            luse[f] = m
    for k in range(8):
        for f in (("A", 3, k), ("B", 3, k)): fuse[f] = NC1; luse[f] = NC1 + 35; forder.append(f)
    slots = {}
    for r in (8, 12, 24, 28, 40, 44, 56, 60, 136, 140, 152, 156): slots[r] = -32
    for r in range(192, 224, 4):
        if r != 204: slots[r] = -16
    for r in list(range(160, 192, 4)) + [128, 132, 144, 148]: slots[r] = 0
    for r in (0, 4, 16, 20, 32, 36, 48, 52): slots[r] = 30
    freg = {}
    csched = {}
    def frag_reads(f):
        ty, r, k = f; R = freg[f]
        if ty in ("A", "A2"):
            b = cA if ty == "A" else cA2; o = 512*k + 64*r
            return [(1, lambda: S.lds(f"ds_read_b64_tr_b16 v[{R}:{R+1}], v{b} offset:{o+8}", ("F", f))),
                    (1, lambda: S.lds(f"ds_read_b64_tr_b16 v[{R+2}:{R+3}], v{b} offset:{o}", ("F", f)))]
        if ty == "B": b = cB_; o = 512*k + 64*(3-r)
        elif ty == "Bh": b = cBh; o = 512*(7-k) + 64*(1-r)
        else: b = cBl; o = 512*(3-k) + 64*(1-r)
        return [(2, lambda: S.lds(f"ds_read_b128 v[{R}:{R+3}], v{b} offset:{o}", ("F", f)))]
    fi = 0; pend = []
    URG = geto("urg", 14)
    for pos in range(-32, NC1):
        budget = 2; nins = 0 if pos >= -16 else 1
        while True:
            if not pend:
                if fi >= len(forder): break
                f = forder[fi]
                cand = [r for r, fr in slots.items() if fr <= pos and not (f[1] == 3 and f[0] in "AB" and r < 48)]
                if not cand: break
                r = min(cand) if not (f[1] == 3 and f[0] in "AB") else max(cand)
                freg[f] = r; slots[r] = luse[f]
                pend = [(f, c, op) for (c, op) in frag_reads(f)]; fi += 1
            f, c, op = pend[0]
            urgent = fuse[f] - pos <= URG
            if c > budget or (nins >= 1 and not urgent and pos >= -16) or nins >= 2: break
            csched.setdefault(pos, []).append(op); pend.pop(0); budget -= c; nins += 1
            if fuse[f] - pos < 5: print("late frag", f, "pos", pos, "first use", fuse[f])
    assert fi == len(forder) and not pend, (fi, len(forder))
    for x, (R, p) in enumerate(((X0, 102), (X1, 104))):
        csched.setdefault(p, []).append(lambda x=x, R=R: S.lds(f"ds_write_b128 v{vXw}, v[{R}:{R+3}] offset:{4096 + x*1024}", "xw"))

    gslot = [0, 0]; ahold = [0]
    def gap(m, need_ds, need_vm, ops, capv, pace, block_vq=True):
        n0 = len(a.lines)
        if need_vm: S.wait_vm(need_vm)
        S.wait_ds(need_ds)
        S(m)
        nmf = len(a.lines)
        for f in ops: f()
        cnt = lambda: sum(1 + l.strip().startswith("v_permlane") for l in a.lines[n0:] if not l.endswith(":"))
        cap = 3
        if len(pending_epi) > 30: cap += 1
        while pending_epi and pending_epi[0][0] <= len(a.lines) and cnt() < cap:
            pending_epi.pop(0)[1]()
        gslot[0] += 1; S.now = gslot[0]
        while vq and cnt() < capv and gslot[0] >= gslot[1] and not (block_vq and pending_epi):
            nv = len(S.vm)
            vq.pop(0)()
            if len(S.vm) > nv: gslot[1] = gslot[0] + pace
        while aq and cnt() < capv and gslot[0] >= ahold[0] and not (block_vq and pending_epi):
            f = aq.pop(0)
            if isinstance(f, Hold): ahold[0] = gslot[0] + f.n
            else: f()
        return nmf
    marks = []
    def mark(t): marks.append((t, len(a.lines)))
    next_dma = 4
    LOOKA = geto("look", 13)
    mark("p0")
    for bi in range(NB):
        p, kl, s, b = blocks[bi]
        M = mfma_list(bi)
        nm = len(M)
        cur_tr[0] = bi + 1; cur_blk[0] = bi
        aq.extend(injecta.pop(bi, []))
        sched = {}
        def at(slot, op): sched.setdefault(min(slot, nm-1), []).append(op)
        t = tr_ops(bi+1) if bi + 1 < NB else []
        tt0 = 0
        if bi == 18: mark("p1")
        if bi == 36: mark("p2")
        if bi == last[s] and s + 1 < NST:
            tt0 = 1
            def bar(s=s, bi=bi):
                nonlocal next_dma
                S.wait_vm({("W", s+1)} | (barx[bi][0] if bi in barx else set()))
                S.wait_ds_all()
                S("s_barrier")
                if bi in barx and barx[bi][1]: vq.insert(0, barx[bi][1])
                while next_dma < NST and avail[next_dma] <= bi and first[next_dma] - bi <= LOOKA:
                    if bi >= P1C: vq[0:0] = dma_ops(next_dma)
                    else: vq.extend(dma_ops(next_dma))
                    next_dma += 1
                vq.extend(inject.pop(bi, []))
            at(0, bar)
        else:
            vq.extend(inject.pop(bi, []))
        if bi >= NB - 2:
            for pos in range(16):
                for op in csched.get(pos - 16*(NB - bi), []): at(pos, op)
        for (sl, op) in forced.get(bi, []): at(sl, op)
        if bi in (6, 18, 24, 36): tstamp("a")
        span = nm - 4 - tt0
        if p == 0 and (kl[0] % 2) == 1 and (kl[0]+1)//2 <= 8:
            xg = (kl[0]+1)//2
            r = xr_ops(xg)
            r[0:1] = [lambda f=r[0], xg=xg: (S.wait_vm({("X", xg)}), f())]
            t = t[:4] + r[:4] + t[4:8] + r[4:] + t[8:]
        if p == 0 and (kl[0] % 2) == 0 and kl[0]//2 + 3 <= 8:
            vq.extend(xload_ops(kl[0]//2 + 3))
        for k, f in enumerate(t): at(tt0 + (k*span)//len(t), f)
        pace = PACE if p < 2 else 2
        if bi < 2: pace = 2
        if bi >= P1C and p == 1: pace = geto("hpace", 3)
        for mi, (m, unit, ks, n, need) in enumerate(M):
            if ks == 0:
                lastq = max([k for k, e in enumerate(pending_epi) if e[2] == unit], default=-1)
                if lastq >= 0:
                    print("WARNING: forced flush of", lastq+1, "epi ops at", bi, mi)
                    for _ in range(lastq+1): pending_epi.pop(0)[1]()
                    S("s_nop 1")
            nmf = gap(m, need, None, sched.get(mi, []), 3, pace)
            if ks == 17 and (n+1) % 4 == 0:
                tt, rt = unit
                for op in epi_ops(p, tt, rt): pending_epi.append((nmf + 8, op, unit))
        if bi in (17, 20, 23, 26, 28, 30, 33, 34, 35, 40, 42, 43, 44): print("block", bi, "vq left", len(vq), "aq", len(aq), "next_dma", next_dma)
        if bi in (12, 30): assert not vq
        if bi in (17, 23, 26, 34): assert not aq, (bi, len(aq))
    assert not inject and not injecta
    if "stop1" in O:
        S("s_nop 7")
        while pending_epi: pending_epi.pop(0)[1]()
        run(aq); run(vq)
    else:
        mark("conv")
        aq.extend([lambda: vq.extend(conv_vq)] + conv_aq)
        def fr(f): R = freg[f]; return f"v[{R}:{R+3}]"
        V_ = lambda s: (lambda: S(s))
        upre = [lambda: (S.wait_ds({"xw"}), None)]
        upre += [(lambda k=k: S.lds(f"ds_read_b64 v[{UD+4*k+2}:{UD+4*k+3}], v{vUe} offset:{UST[0] + 512*k}", "UE")) for k in range(4)] \
             + [lambda: S.lds(f"ds_read_b32 v{UX+1}, v{vAx} offset:{UST[2]}", "UE")]
        udo = []
        for k in range(4):
            r = UD + 4*k
            udo += [V_(f"v_lshlrev_b32 v{r}, 16, v{r+2}"), V_(f"v_and_b32 v{r+1}, s{sMask}, v{r+2}"), V_(f"v_lshlrev_b32 v{r+2}, 16, v{r+3}"), V_(f"v_and_b32 v{r+3}, s{sMask}, v{r+3}")]
            udo += [V_(f"v_mul_f32 v{r+e}, s{sDm}, v{r+e}") for e in range(4)]
            udo += [V_(f"v_cvt_pk_bf16_f32 v{r+e}, 0, v{r+e}") for e in range(4)]
        udo += [V_(f"v_lshlrev_b32 v{UX}, 16, v{UX+1}"), V_(f"v_and_b32 v{UX+1}, s{sMask}, v{UX+1}")]
        udo += [V_(f"v_mul_f32 v{UX+e}, s{sDx}, v{UX+e}") for e in range(2)] + [V_(f"v_cvt_pk_bf16_f32 v{UX+e}, 0, v{UX+e}") for e in range(2)]
        udo[0] = lambda f=udo[0]: (S.wait_ds({"UE"}), f())
        for m, (ac, fa, fb, fst) in enumerate(CM):
            if m == 30: assert not pending_epi
            if m == 108:
                print("conv vq left", len(vq), len(aq)); assert not vq
                aq.extend(upre + [Hold(8)] + udo)
            c = "0" if fst else f"v[{ac}:{ac+3}]"
            gap(f"v_mfma_f32_16x16x32_bf16 v[{ac}:{ac+3}], {fr(fa)}, {fr(fb)}, {c}", {("F", fa), ("F", fb)}, None, csched.get(m, []), 3, 2)
        assert not vq
        print("conv end aq", len(aq))
        tstamp("b")
        S.wait_vm({("S", 2), ("D", 1), "CL"})
        S.wait_ds_all()
        S("s_barrier")
        tstamp("b")
        flag_store(vPr, 3, 0)
        NBUF = 3
        accA, accB1, accB2, accC = 160, 192, 208, 48
        def tr2(r, regs, off, u):
            w = 2 if off >= WINS[2] else (1 if off >= WINS[1] else 0)
            S.lds(f"ds_read_b64_tr_b16 v[{r}:{r+1}], v{regs[w]} offset:{off-WINS[w]}", ("G", u))
        def freg2(u, j): return 16*(u % NBUF) + 4*j
        def tr2_ops(u):
            ty, kl, n, k = units[u]
            ops = []
            for j in range(4):
                r = freg2(u, j)
                for h in range(2):
                    if ty == "A": regs = [vT+j, vT+4+j, vT+8+j]; oo = (k >> 1)*8192 + (k & 1)*1024 + h*512
                    elif ty == "B1": regs = gT1; oo = k*4096 + j*1024 + h*512
                    else: regs = [vT2 + (j & 1), vT2 + 2 + (j & 1), vT2 + 4 + (j & 1)]; oo = k*4096 + (j >> 1)*2048 + h*256
                    ops.append(lambda r=r+2*h, regs=regs, oo=gbase(n) + oo: tr2(r, regs, oo, u))
            return ops
        started = set()
        def mf2(u):
            ty, kl, n, k = units[u]
            L = []
            for j in range(4):
                for rt in range(2):
                    if ty == "A": d = accA + (j*2+rt)*4; ks = kl[0]
                    elif ty == "B1": d = accB1 + rt*4; ks = kl[j]
                    else: d = (accB2 if ty == "B2" else accC) + ((j & 1)*2+rt)*4; ks = kl[j >> 1]
                    c = f"v[{d}:{d+3}]" if d in started else "0"
                    started.add(d)
                    A = freg2(u, j)
                    L.append((f"v_mfma_f32_16x16x32_bf16 v[{d}:{d+3}], v[{A}:{A+3}], {hreg(ks, rt)}, {c}", ks))
            return L
        pre = tr2_ops(0) + tr2_ops(1)
        wpos = [21, 25, 28, 30]
        st0 = (list(S.vm), S.vm_done, list(S.ds), S.ds_done, list(gslot), list(S.dsg))
        vq0 = wd_dma(3) + wd_dma(4) + wd_dma(5)
        aq0 = list(aq)
        S(f"s_bitcmp1_b32 s{sW}, 0")
        S(f"s_cbranch_scc1 {name}_r3b")
        endst = []
        for hw in range(2):
            S.vm, S.vm_done, S.ds, S.ds_done = list(st0[0]), st0[1], list(st0[2]), st0[3]; gslot[:] = st0[4]; S.dsg = list(st0[5]); S.now = gslot[0]
            vq[:] = vq0; aq[:] = aq0
            def rr(Ts):
                Q = {T: [(x, T-x) for x in range(T+1)] for T in Ts}
                L = []
                while any(Q.values()):
                    for T in Ts:
                        if Q[T]: L.append(Q[T].pop(0) + (not Q[T],))
                return L
            L = rr([4,5,6,7]) + rr([0,1,2,3]) if hw == 0 else rr([0,1,2,3]) + rr([4,5,6,7])
            for m, (x, d, lastf) in enumerate(L):
                T = x + d; ac = CACC[T]; dd = ac
                if hw == 1 and T >= 4 and lastf: dd = KEEP[T-4]
                ops = []
                if m in wpos:
                    k = wpos.index(m); R = CACC[4+k] if hw == 0 else CACC[k]
                    ops.append(lambda k=k, R=R: S.lds(f"ds_write_b128 v{vXw}, v[{R}:{R+3}] offset:{k*1024}", "xw"))
                elif m >= 12 and pre[len([q for q in range(12, m) if q not in wpos]):]:
                    ops.append(pre[len([q for q in range(12, m) if q not in wpos])])
                gap(f"v_mfma_f32_16x16x32_bf16 v[{dd}:{dd+3}], {fr(('A',3,x))}, {fr(('B',3,d))}, v[{ac}:{ac+3}]", set(), None, ops, 3, 2)
            endst.append((list(S.vm), S.vm_done, list(S.ds), S.ds_done, list(gslot), len(vq), len(aq)))
            if hw == 0:
                S(f"s_branch {name}_r3e")
                S(f"{name}_r3b:")
        S(f"{name}_r3e:")
        assert endst[0] == endst[1]
        tstamp("b")
        mark("g2")
        injV = {}; injA = {}; barA = {}
        def iv(u, ops): injV.setdefault(u, []).extend(ops)
        def ia(u, ops): injA.setdefault(u, []).extend(ops)
        RECV = accC
        p3_i, p3_c = poll_ops([f"buffer_load_dword v{vPr}, v{vPH}, s[{SWS}:{SWS+3}], s{sFp} offen sc1"], [f"v_cmp_le_u32 vcc, 3, v{vPr}"])
        iv(0, wd_dma(6) + wd_dma(7))
        iv(geto("p3i", 3), p3_i)
        iv(geto("p3c", 7), p3_c + [o for ks in ksB + ksC for o in h_ops(ks)])
        ce = [(lambda k=k: S.lds(f"ds_read_b128 v[{RECV+4*k}:{RECV+4*k+3}], v{vXp} offset:{k*1024}", ("R", k))) for k in range(4)]
        XR = 80
        ce += [(lambda s=s: S.lds(f"ds_read_b64 v[{XR+2*s}:{XR+2*s+1}], v{vXe} offset:{s*6144}", "XR")) for s in range(4)]
        ce.append(Hold(6))
        for k in range(4):
            y = KEEP[k]; r = RECV + 4*k; o = RECV + 8*(k >> 1) + 2*(k & 1)
            ce.append(lambda k=k, y=y, r=r: (S.wait_ds({("R", k)}), S(f"v_add_f32 v{y}, v{y}, v{r}")))
            ce += [V_(f"v_add_f32 v{y+e}, v{y+e}, v{r+e}") for e in range(1, 4)]
            ce += [V_(f"v_cvt_pk_bf16_f32 v{y+e}, 0, v{y+e}") for e in range(4)]
            ce += [V_(f"v_add_f32 v{y+e}, v{y+e}, v{UD+4*k+e}") for e in range(4)]
            ce += [V_(f"v_cvt_pk_bf16_f32 v{o}, v{y}, v{y+1}"), V_(f"v_cvt_pk_bf16_f32 v{o+1}, v{y+2}, v{y+3}")]
            if k & 1:
                O4 = RECV + 8*(k >> 1)
                ce += [Hold(1), V_(f"v_permlane16_swap_b32 v{O4}, v{O4+2}"), V_(f"v_permlane16_swap_b32 v{O4+1}, v{O4+3}"),
                       lambda O4=O4, k=k: S.vmem(f"buffer_store_dwordx4 v[{O4}:{O4+3}], v{vAo}, s[{SWS}:{SWS+3}], s{sAo} offen offset:{(k>>1)*1024} sc1", "AT")]
        ce.append(lambda: (S.wait_ds({"XR"}), S(f"v_add_f32 v{XR}, v{XR}, v{XR+2}")))
        ce += [V_(l) for l in f"""v_add_f32 v{XR+1}, v{XR+1}, v{XR+3}
        v_add_f32 v{XR+4}, v{XR+4}, v{XR+6}
        v_add_f32 v{XR+5}, v{XR+5}, v{XR+7}
        v_add_f32 v{XR}, v{XR}, v{XR+4}
        v_add_f32 v{XR+1}, v{XR+1}, v{XR+5}
        v_cvt_pk_bf16_f32 v{XR}, 0, v{XR}
        v_cvt_pk_bf16_f32 v{XR+1}, 0, v{XR+1}
        v_add_f32 v{XR}, v{XR}, v{UX}
        v_add_f32 v{XR+1}, v{XR+1}, v{UX+1}
        v_cvt_pk_bf16_f32 v{XR}, v{XR}, v{XR+1}""".split("\n")]
        ce.append(lambda: S.vmem(f"buffer_store_dword v{XR}, v{vAx}, s[{SWS}:{SWS+3}], s{sAx} offen sc1", "AT"))
        barA[1] = (set(), {"xw"}, lambda: aq.extend(ce))
        barA[2] = (set(), {"XR", ("R", 3)}, None)
        CFS = geto("cfs", 4)
        def cflag():
            assert S.vm.count("AT") == 3
            vq.insert(0, lambda: flag_store(vPr, 1, 1))
        barA[CFS] = ({"AT"}, set(), cflag)
        def pstore(x, y, d, rt):
            return [V_(f"v_cvt_pk_bf16_f32 v{x}, v{x}, v{x+1}"), V_(f"v_cvt_pk_bf16_f32 v{x+1}, v{x+2}, v{x+3}"),
                    V_(f"v_cvt_pk_bf16_f32 v{x+2}, v{y}, v{y+1}"), V_(f"v_cvt_pk_bf16_f32 v{x+3}, v{y+2}, v{y+3}"),
                    lambda: S.vmem(f"buffer_store_dwordx4 v[{x}:{x+3}], v{vS01}, s[{SWS}:{SWS+3}], s{sPd + d} offen offset:{rt*1024} sc1", "P")]
        ia(48, [Hold(3)] + [o for d in range(2) for rt in range(2) for o in pstore(accA + (4*d+rt)*4, accA + (4*d+2+rt)*4, d, rt)])
        x, y = accB1, accB1 + 4
        ia(53, [Hold(3)] + pstore(x, y, 0, 0)[:4] + [lambda: S.vmem(f"buffer_store_dwordx4 v[{accB1}:{accB1+3}], v{vP8}, s[{SWS}:{SWS+3}], s{sP8o} offen sc1", "P")])
        ia(63, [Hold(3)] + [o for rt in range(2) for o in pstore(accB2 + rt*4, accB2 + (2+rt)*4, 2, rt)])
        PL = 160; P8L = 184; AL = [200, 80]; G0, G1, G8 = 88, 90, 92; A8 = 94
        GA = 64; SUM = 96; TM = 80
        vCf, vAi, vGi, vG8, vA8, vO, vO8 = 242, 243, 244, 245, 246, 247, 249
        vSh, vAw, vAr = 248, 251, 254
        q_, n_, w2, w3, w4, w5 = 192, 193, 194, 195, 196, 197
        fs = lines(f"""
        v_lshrrev_b32 v{q_}, 4, v{vL}
        v_and_b32 v{n_}, 15, v{vL}
        v_add_u32 v{vCf}, s{sCa}, v{vL}
        v_and_b32 v{vCf}, 255, v{vCf}
        v_and_b32 v{w2}, 3, v{vL}
        v_cmp_gt_u32 vcc, 32, v{vL}
        v_add_u32 v{w2}, s{sCx}, v{w2}
        v_lshrrev_b32 v{vAi}, 1, v{vL}
        v_cndmask_b32 v{vCf}, v{w2}, v{vCf}, vcc
        v_lshlrev_b32 v{vCf}, 7, v{vCf}
        v_lshlrev_b32 v{vAi}, 12, v{vAi}
        v_and_b32 v{w2}, 1, v{vL}
        v_lshl_add_u32 v{vAi}, v{w2}, 4, v{vAi}
        v_lshlrev_b32 v{vGi}, 2, v{n_}
        v_lshrrev_b32 v{w3}, 1, v{q_}
        v_lshl_add_u32 v{w4}, v{w3}, 4, v{n_}      ; row8
        v_lshlrev_b32 v{vG8}, 2, v{w4}
        v_and_b32 v{w5}, 1, v{q_}
        v_and_b32 v{vA8}, 30, v{w4}
        v_lshlrev_b32 v{vA8}, 1, v{vA8}
        v_lshl_add_u32 v{vA8}, v{w5}, 13, v{vA8}
        v_mul_u32_u24 v{vO}, 1152, v{n_}
        v_lshl_add_u32 v{vO}, v{w5}, 5, v{vO}
        v_lshl_add_u32 v{vO}, v{w3}, 4, v{vO}
        v_mul_u32_u24 v{vO8}, 1152, v{w4}
        v_lshl_add_u32 v{vO8}, v{w5}, 2, v{vO8}
        """)
        ia(0, fs)
        fsl = lines(f"""
        v_and_b32 v{vSh}, 1, v{vL}
        v_lshlrev_b32 v{vSh}, 4, v{vSh}
        v_xor_b32 v{vSh}, 16, v{vSh}
        v_add_u32 v{vAr}, s{sAst}, v{gT1[0]}
        s_sub_u32 s{sT1}, s{sAst}, s3
        v_add_u32 v{vAw}, s{sT1}, v{vS01}
        """)
        pc_i, pc_c = poll_ops([f"buffer_load_dword v{vPr}, v{vCf}, s[{SWS}:{SWS+3}], s{sFb} offen offset:4 sc1"], [f"v_cmp_le_u32 vcc, 1, v{vPr}"])
        ia(geto("pci", 40), fsl + pc_i)
        W_ = lambda s, tag: (lambda: S.vmem(s, tag))
        fl = [W_(f"buffer_load_dwordx4 v[{AL[rt]}:{AL[rt]+3}], v{vAi}, s[{SWS}:{SWS+3}], s{sAi} offen offset:{32*rt} sc1", ("AL", rt)) for rt in range(2)]
        fl += [W_(f"buffer_load_dword v{G0}, v{vGi}, s[{SWS}:{SWS+3}], s{sGi} offen sc1", "GL"),
               W_(f"buffer_load_dword v{G1}, v{vGi}, s[{SWS}:{SWS+3}], s{sGi} offen offset:64 sc1", "GL"),
               W_(f"buffer_load_dword v{G8}, v{vG8}, s[{SWS}:{SWS+3}], s{sGi} offen sc1", "GL"),
               W_(f"buffer_load_dword v{A8}, v{vA8}, s[{SWS}:{SWS+3}], s{sA8} offen sc1", "GL"),
               W_(f"buffer_load_dword v{A8+1}, v{vA8}, s[{SWS}:{SWS+3}], s{sA8b} offen sc1", "GL")]
        def pl(d, rt): return PL + (d*2+rt)*4
        def maxtree(regs, dst):
            L = [f"v_max3_u32 v{dst}, v{regs[0]}, v{regs[1]}, v{regs[2]}"]; regs = regs[3:]
            while len(regs) >= 2: L.append(f"v_max3_u32 v{dst}, v{dst}, v{regs[0]}, v{regs[1]}"); regs = regs[2:]
            if regs: L.append(f"v_max_u32 v{dst}, v{dst}, v{regs[0]}")
            return L + [f"v_cmp_ne_u32 vcc, -1, v{dst}"]
        l1 = [f"buffer_load_dwordx4 v[{pl(d,rt)}:{pl(d,rt)+3}], v{vS01}, s[{SWS}:{SWS+3}], s{sPin if d == 0 else sP1} offen offset:{rt*1024} sc1" for d in range(2) for rt in range(2)]
        l1.append(f"buffer_load_dwordx4 v[{P8L}:{P8L+3}], v{vS01}, s[{SWS}:{SWS+3}], s{sP8in} offen sc1")
        k1_i, k1_c = poll_ops(l1, maxtree(list(range(PL, PL+16)) + list(range(P8L, P8L+4)), TM))
        l2 = [f"buffer_load_dwordx4 v[{pl(2,rt)}:{pl(2,rt)+3}], v{vS01}, s[{SWS}:{SWS+3}], s{sP2} offen offset:{rt*1024} sc1" for rt in range(2)]
        k2_i, k2_c = poll_ops(l2, maxtree(list(range(PL+16, PL+24)), TM))
        ia(geto("pcc", 44), pc_c + fl)
        ia(geto("k1i", 61), k1_i)
        f2 = []
        for rt in range(2):
            f2.append(lambda rt=rt: (S.wait_vm({("AL", rt)}), S.lds(f"ds_write_b128 v{vAw}, v[{AL[rt]}:{AL[rt]+3}] offset:{rt*1024}", ("AW", rt))))
        f2 += [lambda: (S.wait_vm({"GL"}), S(f"v_sub_f32 v{G0+1}, 1.0, v{G0}")), V_(f"v_sub_f32 v{G1+1}, 1.0, v{G1}"), V_(f"v_sub_f32 v{G8+1}, 1.0, v{G8}")]
        f2 += [V_(f"v_cvt_pk_bf16_f32 v{g+1}, 0, v{g+1}") for g in (G0, G1, G8)]
        f2.append(Hold(3))
        for rt in range(2):
            f2.append(lambda rt=rt: (S.wait_ds({("AW", rt)}), S.lds(f"ds_read_b64_tr_b16 v[{AL[rt]}:{AL[rt]+1}], v{vAr} offset:{rt*1024}", ("AR", rt))))
            f2.append(lambda rt=rt: S.lds(f"ds_read_b64_tr_b16 v[{AL[rt]+2}:{AL[rt]+3}], v{vAr} offset:{rt*1024+512}", ("AR", rt)))
        for e in range(2):
            f2 += [V_(f"v_lshlrev_b32 v{A8+e}, v{vSh}, v{A8+e}"), V_(f"v_and_b32 v{A8+e}, s{sMask}, v{A8+e}"),
                   V_(f"v_mul_f32 v{A8+e}, v{A8+e}, v{G8}"), V_(f"v_cvt_pk_bf16_f32 v{A8+e}, 0, v{A8+e}")]
        for rt in range(2):
            g = (G0, G1)[rt]; o = GA + 8*rt
            for k in range(4):
                op = V_(f"v_lshlrev_b32 v{o+2*k}, 16, v{AL[rt]+k}")
                if k == 0: f2.append(lambda rt=rt, op=op: (S.wait_ds({("AR", rt)}), op()))
                else: f2.append(op)
                f2.append(V_(f"v_and_b32 v{o+2*k+1}, s{sMask}, v{AL[rt]+k}"))
            f2 += [V_(f"v_mul_f32 v{o+e}, v{o+e}, v{g}") for e in range(8)]
            f2 += [V_(f"v_cvt_pk_bf16_f32 v{o+e}, 0, v{o+e}") for e in range(8)]
        ia(geto("f2u", 54), f2)
        f3 = list(k1_c)
        for rt in range(2):
            sm = SUM + 8*rt
            for k in range(4):
                f3 += [V_(f"v_lshlrev_b32 v{sm+2*k}, 16, v{pl(0,rt)+k}"), V_(f"v_and_b32 v{sm+2*k+1}, s{sMask}, v{pl(0,rt)+k}"),
                       V_(f"v_lshlrev_b32 v{TM}, 16, v{pl(1,rt)+k}"), V_(f"v_and_b32 v{TM+1}, s{sMask}, v{pl(1,rt)+k}"),
                       V_(f"v_add_f32 v{sm+2*k}, v{sm+2*k}, v{TM}"), V_(f"v_add_f32 v{sm+2*k+1}, v{sm+2*k+1}, v{TM+1}")]
        for k in range(4):
            f3 += [V_(f"v_lshlrev_b32 v{TM+2*k}, 16, v{P8L+k}"), V_(f"v_and_b32 v{TM+2*k+1}, s{sMask}, v{P8L+k}")]
        f3.append(Hold(1))
        f3 += [V_(f"v_permlane32_swap_b32 v{TM+e}, v{TM+4+e}") for e in range(4)]
        f3 += [V_(f"v_add_f32 v{TM+e}, v{TM+e}, v{TM+4+e}") for e in range(4)]
        f3.append(Hold(1))
        f3 += [V_(f"v_permlane16_swap_b32 v{TM+e}, v{TM+2+e}") for e in range(2)]
        f3 += [V_(f"v_add_f32 v{TM+e}, v{TM+e}, v{TM+2+e}") for e in range(2)]
        f3 += [V_(f"v_cvt_pk_bf16_f32 v{TM+e}, 0, v{TM+e}") for e in range(2)]
        f3 += [V_(f"v_mul_f32 v{TM+e}, v{TM+e}, v{G8+1}") for e in range(2)]
        f3 += [V_(f"v_cvt_pk_bf16_f32 v{TM+e}, 0, v{TM+e}") for e in range(2)]
        f3 += [V_(f"v_add_f32 v{TM+e}, v{TM+e}, v{A8+e}") for e in range(2)]
        f3 += [V_(f"v_cvt_pk_bf16_f32 v{TM+2}, v{TM}, v{TM+1}"),
               W_(f"buffer_store_dword v{TM+2}, v{vO8}, s[{SOUT}:{SOUT+3}], s{sO8} offen", "O")]
        ia(geto("f3u", 67), f3)
        iv(geto("k2i", 75), k2_i)
        ndma = 8
        for u in range(NU):
            ty, kl, n, k = units[u]
            M = mf2(u)
            nb = u + NBUF - 1
            t = tr2_ops(nb) if nb < NU else []
            sched = {}
            o0 = 0
            if nb < NU and gstage[units[nb][2]] != gstage[units[nb-1][2]]:
                s1 = gstage[units[nb][2]]
                def bar(s1=s1, u=u):
                    nonlocal ndma
                    ex = barA.get(s1, (set(), set(), None))
                    S.wait_vm({("D", g) for g in range(NG) if gstage[g] == s1} | ex[0])
                    S.wait_ds(ex[1])
                    S("s_barrier")
                    if s1 in (1, 2, 4, 6, 8): tstamp("b")
                    if ex[2]: ex[2]()
                    while ndma < NG and ((ndma < 10 and s1 >= 2) or (ndma >= 10 and glast[ndma-10] < u)):
                        vq.extend(wd_dma(ndma)); ndma += 1
                sched[0] = [bar]; o0 = 1
            vq.extend(injV.pop(u, [])); aq.extend(injA.pop(u, []))
            for k2, f in enumerate(t): sched.setdefault(min(7, o0 + k2), []).append(f)
            for mi, (m, ks) in enumerate(M):
                gap(m, {("G", u)} if mi == 0 else set(), {("H", ks)}, sched.get(mi, []), 3, 2, block_vq=False)
            if u in (5, 13, 21, 27, 39, 47, 52, 53, 60, 62, 64, 66, 74, 80): print("unit", u, "vq", len(vq), "aq", len(aq), "ndma", ndma)
        assert not injV and not injA
        tstamp("b")
        mark("tail")
        run(vq); vq[:] = []
        for f in aq:
            if isinstance(f, Hold): S("s_nop 1")
            else: f()
        aq[:] = []
        run(k2_c)
        tstamp("b")
        for rt in range(2):
            sm = SUM + 8*rt
            for k in range(4):
                S(f"v_lshlrev_b32 v{TM+2*k}, 16, v{pl(2,rt)+k}"); S(f"v_and_b32 v{TM+2*k+1}, s{sMask}, v{pl(2,rt)+k}")
            for k in range(4): S(f"v_pk_add_f32 v[{sm+2*k}:{sm+2*k+1}], v[{sm+2*k}:{sm+2*k+1}], v[{TM+2*k}:{TM+2*k+1}]")
        for rt in range(2):
            sm = SUM + 8*rt; g = (G0, G1)[rt]; o = GA + 8*rt
            for k in range(4):
                ac = accC + ((k >> 1)*2 + rt)*4 + 2*(k & 1)
                S(f"v_pk_add_f32 v[{sm+2*k}:{sm+2*k+1}], v[{sm+2*k}:{sm+2*k+1}], v[{ac}:{ac+1}]")
            for e in range(8): S(f"v_cvt_pk_bf16_f32 v{sm+e}, 0, v{sm+e}")
            for k in range(4): S(f"v_pk_mul_f32 v[{sm+2*k}:{sm+2*k+1}], v[{sm+2*k}:{sm+2*k+1}], v[{g}:{g+1}] op_sel:[0,1] op_sel_hi:[1,1]")
            for e in range(8): S(f"v_cvt_pk_bf16_f32 v{sm+e}, 0, v{sm+e}")
            for k in range(4): S(f"v_pk_add_f32 v[{sm+2*k}:{sm+2*k+1}], v[{sm+2*k}:{sm+2*k+1}], v[{o+2*k}:{o+2*k+1}]")
            for k in range(4): S(f"v_cvt_pk_bf16_f32 v{o+k}, v{sm+2*k}, v{sm+2*k+1}")
            S("s_nop 1")
            S(f"v_permlane16_swap_b32 v{o}, v{o+2}")
            S(f"v_permlane16_swap_b32 v{o+1}, v{o+3}")
            S.vmem(f"buffer_store_dwordx4 v[{o}:{o+3}], v{vO}, s[{SOUT}:{SOUT+3}], s{(sO0, sO1)[rt]} offen", "O")
    mark("end")
    if fine:
        tstamp("ab")
        S("s_waitcnt vmcnt(0)")
        tstamp("ab")
        dump(0, vL)
    a("s_endpgm")
    for t in slow: a(t)
    a(f"{name}_end:")
    a("s_endpgm")
    a.end_kernel(name, 512, accum=256)
    for (t, l0), (_, l1) in zip(marks, marks[1:]):
        tot = 0; n = 0; cur = None; hist = {}
        for l in a.lines[l0:l1] + ["v_mfma"]:
            s = l.split(";")[0].strip()
            if not s or s.endswith(":"): continue
            if s.startswith("v_mfma"):
                if cur is not None:
                    k = sum(1 + c.startswith("v_permlane") for c in cur); sal = all(c.startswith("s_") for c in cur)
                    tot += max(16, (4 if sal else 8) + 4*k); hist[k] = hist.get(k, 0) + 1
                cur = []; n += 1
            elif cur is not None: cur.append(s)
            else: tot += 4
        print("section", t, "mfma", n-1, "est", tot, sorted(hist.items()))

if __name__ == "__main__":
    ap = argparse.ArgumentParser()
    ap.add_argument("out"); ap.add_argument("--fine", default=""); ap.add_argument("--opt", default=""); ap.add_argument("--wsb", type=lambda s: int(s, 0), default=0)
    x = ap.parse_args()
    a = Asm()
    KN = "gated_mix__ssm_conv_s4__glu_gated_bilinear__prompt_kernel"
    gen_fused(a, KN, fine=x.fine, opt=x.opt, ws_base=x.wsb)
    t = a.text()
    open(x.out, "w").write("; @launch grid=(256,1,1) block=(256,1,1) lds=163840\n" + t)
```
